```python
import torch

def _softmax(x, axis=-1):
    return torch.softmax(x, dim=axis)

def _gelu(x):
    return torch.nn.functional.gelu(x, approximate='tanh')

def _silu(x):
    return torch.nn.functional.silu(x)

def _sigmoid(x):
    return torch.sigmoid(x)

def _layernorm(x, axis=-1, eps=1e-05):
    m = x.mean(dim=axis, keepdim=True)
    v = x.var(dim=axis, keepdim=True, unbiased=False)
    return (x - m) / torch.sqrt(v + eps)

def _scatter_add(tgt, idx, src, axis=0):
    return tgt.clone().index_add_(axis, idx, src)

def _segment_sum(src, seg, n):
    out = torch.zeros((n,) + src.shape[1:], dtype=src.dtype)
    return out.index_add_(0, seg, src)

def _pad(x, pw):
    flat = tuple((v for pair in reversed(pw) for v in pair))
    return torch.nn.functional.pad(x, flat)
kernel_name = 'standalone__tree_speculative_verify_tree_attention_over_candidate_token_tree__decode'

def setup_inputs():

    _w = lambda a: (lambda t: t.to(torch.bfloat16) if t.is_floating_point() else t)(torch.as_tensor(a))
    B, Hq, Hkv, T, C, D = (1, 32, 16, 1, 8192, 128)
    tree_mask = torch.zeros((B, T, T), dtype=float)
    for b in range(B):
        parent = torch.zeros(T, dtype=torch.int64)
        for i in range(1, T):
            parent[i] = int(torch.randint(0, i, (1,)).item())
        for i in range(T):
            j = i
            tree_mask[b, i, j] = 1.0
            while j > 0:
                j = parent[j]
                tree_mask[b, i, j] = 1.0
    return {'q': _w((lambda *s: torch.randn(*s, dtype=torch.bfloat16) * 0.8)(B, Hq, T, D)), 'k_cache': _w((lambda *s: torch.randn(*s, dtype=torch.bfloat16) * 0.8)(B, Hkv, C, D)), 'v_cache': _w((lambda *s: torch.randn(*s, dtype=torch.bfloat16) * 0.05)(B, Hkv, C, D)), 'k_tree': _w((lambda *s: torch.randn(*s, dtype=torch.bfloat16) * 0.8)(B, Hkv, T, D)), 'v_tree': _w((lambda *s: torch.randn(*s, dtype=torch.bfloat16) * 0.05)(B, Hkv, T, D)), 'tree_mask': _w(tree_mask)}

def reference(q, k_cache, v_cache, k_tree, v_tree, tree_mask):
    B, Hq, T, D = q.shape
    Hkv, C = (k_cache.shape[1], k_cache.shape[2])
    rep = Hq // Hkv
    kc = (lambda x, n, axis: torch.repeat_interleave(x, n, dim=axis))(k_cache, rep, axis=1)
    vc = (lambda x, n, axis: torch.repeat_interleave(x, n, dim=axis))(v_cache, rep, axis=1)
    kt = (lambda x, n, axis: torch.repeat_interleave(x, n, dim=axis))(k_tree, rep, axis=1)
    vt = (lambda x, n, axis: torch.repeat_interleave(x, n, dim=axis))(v_tree, rep, axis=1)
    k = torch.concatenate([kc, kt], axis=2)
    v = torch.concatenate([vc, vt], axis=2)
    scale = D ** (-0.5)
    scores = torch.einsum('bhqd,bhkd->bhqk', q, k) * scale
    ctx_mask = torch.ones((B, 1, T, C), dtype=scores.dtype)
    tm = tree_mask[:, None, :, :].clone()
    full_mask = torch.concatenate([ctx_mask, tm], axis=-1)
    scores = scores + (1.0 - full_mask) * -1000000000.0
    p = _softmax(scores, axis=-1)
    return torch.einsum('bhqk,bhkd->bhqd', p, v)
```

```python
import struct, sys, math, argparse

NAME = "standalone__tree_speculative_verify_tree_attention_over_candidate_token_tree__decode"

def f2u(x):
    return struct.unpack("<I", struct.pack("<f", x))[0]

HEADER = """; Kernarg layout for this problem (72 bytes, ptrs only, base s[0:1]):
"""

class G:
    def __init__(self):
        self.l = []
    def __call__(self, s):
        self.l.append("    " + s)
    def lab(self, s):
        self.l.append(s + ":")
    def c(self, s):
        self.l.append("    ; " + s)
    def text(self):
        return "\n".join(self.l) + "\n"

def vr(a, n=1):
    return f"v{a}" if n == 1 else f"v[{a}:{a+n-1}]"

def gen(o):
    NW = o.nw
    NT = 128 // NW
    kf = o.kflags.replace("_", " ")
    vf = o.vflags.replace("_", " ")
    C = math.log2(math.e) / math.sqrt(128.0)
    g = G()
    sQ, sK, sV, sKT, sVT, sMK, sOUT, sDBG, sWS = 4, 6, 8, 10, 12, 14, 16, 18, 20
    sHK, sSP, sW, sT0, sT1, sC, sSPEC, sCNT = 22, 23, 24, 25, 26, 27, 28, 29
    sST = 32
    def sp(a): return f"s[{a}:{a+1}]"
    vLane, vW, vCh, vT0, vT1, vT2, vT3 = 1, 2, 3, 4, 5, 6, 7
    nA = (NT + 7) // 8 if o.pattern == "wave" else None
    vQo = 8
    vSl = 9
    vM, vL, vStr, vLds, vMk = 10, 11, 12, 13, 14
    vKo = 16
    vVo = 24
    vQ = 32
    vMask = 36
    vAcc = 40
    vKt = 44
    vVt = 48
    vD = 52
    vS = 68
    vK = (vS + NT + 3) // 4 * 4
    vV = vK + 4 * NT
    nv = vV + 4 * NT
    stamps = []
    def stamp(i):
        if o.diag:
            g(f"s_memrealtime s[{sST+2*i}:{sST+2*i+1}]")
            stamps.append(i)

    g("s_cmp_ge_u32 s2, 256")
    g("s_cbranch_scc1 L_end")
    g(f"s_load_dwordx16 s[4:19], s[0:1], 0")
    g(f"s_load_dwordx2 s[20:21], s[0:1], 64")
    stamp(0)
    if o.map == "xcd":
        g(f"s_and_b32 s{sHK}, s2, 15")
        g(f"s_lshr_b32 s{sSP}, s2, 4")
    else:
        g(f"s_and_b32 s{sSP}, s2, 15")
        g(f"s_lshr_b32 s{sHK}, s2, 4")
    g(f"v_and_b32 v{vLane}, 63, v0")
    g(f"v_lshrrev_b32 v{vW}, 6, v0")
    g(f"s_lshl_b32 s{sT0}, s{sHK}, 21")
    lg = lambda x: int(math.log2(x))
    if o.pattern == "wave":
        sp_sh, w_sh = 17, 10 + lg(NT)
        toff = [t * 1024 for t in range(NT)]
    elif o.pattern == "wg":
        sp_sh, w_sh = 17, 10
        toff = [t * NW * 1024 for t in range(NT)]
    elif o.pattern == "wg4":
        sp_sh, w_sh = 17, 12
        toff = [(t // 4) * NW * 4096 + (t % 4) * 1024 for t in range(NT)]
    elif o.pattern == "head":
        sp_sh, w_sh = 10 + lg(NW), 10
        toff = [t * 16 * NW * 1024 for t in range(NT)]
    elif o.pattern == "head4":
        sp_sh, w_sh = 12 + lg(NW), 12
        toff = [(t // 4) * 16 * NW * 4096 + (t % 4) * 1024 for t in range(NT)]
    else:
        raise ValueError
    areg = []
    tmap = []
    for t in range(NT):
        for i, b in enumerate(areg):
            if -4096 <= toff[t] - b <= 4095:
                tmap.append((i, toff[t] - b)); break
        else:
            areg.append(toff[t] + 4096)
            tmap.append((len(areg) - 1, -4096))
    use_soff = len(areg) > 8
    g(f"s_lshl_b32 s{sT1}, s{sSP}, {sp_sh}")
    g(f"v_readfirstlane_b32 s{sW}, v{vW}")
    g(f"s_add_u32 s{sT0}, s{sT0}, s{sT1}")
    g(f"v_lshrrev_b32 v{vT0}, 4, v{vLane}")
    g(f"v_lshlrev_b32 v{vT0}, 6, v{vT0}")
    g(f"v_and_b32 v{vT1}, 3, v{vLane}")
    g(f"v_lshl_add_u32 v{vCh}, v{vT1}, 4, v{vT0}")
    g(f"v_bfe_u32 v{vT2}, v{vLane}, 2, 2")
    g(f"v_lshl_add_u32 v{vT2}, v{vT2}, 8, v{vCh}")
    g(f"v_lshl_add_u32 v{vT3}, v{vW}, {w_sh}, s{sT0}")
    g(f"v_add_u32 v{vT2}, v{vT2}, v{vT3}")
    g(f"v_lshl_add_u32 v{vT3}, v{vLane}, 4, v{vT3}")
    if not use_soff:
        for i, b in enumerate(areg):
            g(f"v_add_u32 v{vKo+i}, {b}, v{vT2}")
        for i, b in enumerate(areg):
            g(f"v_add_u32 v{vVo+i}, {b}, v{vT3}")
    else:
        g(f"v_mov_b32 v{vKo}, v{vT2}")
        g(f"v_mov_b32 v{vVo}, v{vT3}")
    g(f"v_bfe_u32 v{vT0}, v{vLane}, 3, 1")
    g(f"v_lshl_add_u32 v{vT0}, v{vT0}, 8, v{vCh}")
    g(f"s_lshl_b32 s{sT1}, s{sHK}, 9")
    g(f"v_add_u32 v{vQo}, s{sT1}, v{vT0}")
    g(f"s_xor_b32 s{sSPEC}, s{sW}, 1")
    g(f"s_or_b32 s{sSPEC}, s{sSPEC}, s{sSP}")
    g(f"s_cmp_lg_u32 s{sSPEC}, 0")
    g("s_waitcnt lgkmcnt(0)")
    stamp(1)
    g("s_cbranch_scc1 L_notree0")
    g(f"s_lshl_b32 s{sT1}, s{sHK}, 8")
    g(f"v_add_u32 v{vT0}, s{sT1}, v{vCh}")
    g(f"v_and_b32 v{vT1}, 15, v{vLane}")
    g(f"v_lshl_add_u32 v{vT1}, v{vT1}, 4, s{sT1}")
    g(f"v_mov_b32 v{vMk}, 0")
    g(f"global_load_dwordx4 {vr(vKt,4)}, v{vT0}, {sp(sKT)}")
    g(f"global_load_dwordx4 {vr(vVt,4)}, v{vT1}, {sp(sVT)}")
    g(f"global_load_ushort v{vMk}, v{vMk}, {sp(sMK)}")
    g.lab("L_notree0")
    g(f"global_load_dwordx4 {vr(vQ,4)}, v{vQo}, {sp(sQ)}")
    def loads(vdst, vo, sb, fl):
        if not use_soff:
            for t in range(NT):
                i, im = tmap[t]
                g(f"global_load_dwordx4 {vr(vdst+4*t,4)}, v{vo+i}, {sp(sb)} offset:{im} {fl}")
        else:
            cur = 0
            for t in range(NT):
                d = toff[t] - cur
                if not (-4096 <= d <= 4095):
                    g(f"s_add_u32 s{sb}, s{sb}, {d}")
                    g(f"s_addc_u32 s{sb+1}, s{sb+1}, 0")
                    cur = toff[t]; d = 0
                g(f"global_load_dwordx4 {vr(vdst+4*t,4)}, v{vo}, {sp(sb)} offset:{d} {fl}")
    loads(vK, vKo, sK, kf)
    g(f"s_lshl_b32 s{sT0}, s{sHK}, 4")
    g(f"s_add_u32 s{sT0}, s{sT0}, s{sSP}")
    g(f"s_lshl_b32 s{sT0}, s{sT0}, 11")
    g(f"v_lshrrev_b32 v{vT0}, 5, v{vLane}")
    g(f"v_lshl_add_u32 v{vSl}, v{vT0}, 9, s{sT0}")
    g(f"v_lshl_add_u32 v{vM}, v{vT0}, 3, s{sT0}")
    g(f"v_and_b32 v{vT1}, 15, v{vLane}")
    g(f"v_lshl_add_u32 v{vSl}, v{vT1}, 5, v{vSl}")
    g(f"v_bfe_u32 v{vT1}, v{vLane}, 4, 1")
    g(f"v_lshl_add_u32 v{vSl}, v{vT1}, 4, v{vSl}")
    if o.proto == "poll":
        g(f"s_cmp_lg_u32 s{sW}, 0")
        g("s_cbranch_scc1 L_noclear")
        for i in range(4):
            g(f"v_mov_b32 v{vD+i}, -1")
        g(f"global_store_dwordx4 v{vSl}, {vr(vD,4)}, {sp(sWS)} sc1")
        g(f"s_mov_b32 exec_lo, 1")
        g(f"s_mov_b32 exec_hi, 1")
        g(f"global_store_dwordx2 v{vM}, {vr(vD,2)}, {sp(sWS)} offset:1024 sc1")
        g(f"s_mov_b64 exec, -1")
        g.lab("L_noclear")
    loads(vV, vVo, sV, vf)
    stamp(2)
    g(f"v_and_b32 v{vT0}, 1, v{vLane}")
    g(f"v_lshlrev_b32 v{vT0}, 4, v{vT0}")
    g(f"s_mov_b32 s{sT0}, 0xffff")
    g(f"v_lshlrev_b32 v{vT0}, v{vT0}, s{sT0}")
    g(f"v_bfe_u32 v{vT1}, v{vLane}, 1, 2")
    for r in range(4):
        g(f"v_cmp_eq_u32 vcc, {r}, v{vT1}")
        g("s_nop 1")
        g(f"v_cndmask_b32 v{vMask+r}, 0, v{vT0}, vcc")
    g(f"s_mov_b32 s{sC}, {hex(f2u(C))}")
    for i in range(4):
        g(f"v_mov_b32 v{vAcc+i}, 0")
    g(f"v_bfe_u32 v{vT0}, v{vLane}, 3, 1")
    g(f"v_lshlrev_b32 v{vLds}, {lg(4*NW)}, v{vT0}")
    LM, LL, LO = 0, 8 * NW, 256
    def qk_group(tiles, srcs, dsts):
        for i, s_ in enumerate(srcs):
            g(f"v_mfma_f32_16x16x32_bf16 {vr(vD+4*i,4)}, {vr(s_,4)}, {vr(vQ,4)}, 0")
        n = len(srcs)
        g(f"s_nop {8 - n + 1}")
        for r in range(4):
            for i, d_ in enumerate(dsts):
                if r == 0:
                    g(f"v_mov_b32_dpp v{d_}, v{vD+4*i} quad_perm:[0,0,0,0] row_mask:0xf bank_mask:0xf")
                else:
                    g(f"v_add_f32_dpp v{d_}, v{vD+4*i+r}, v{d_} quad_perm:[{r},{r},{r},{r}] row_mask:0xf bank_mask:0xf")
            if n < 3:
                g(f"s_nop {2 - n}")
    for grp in range(NT // 4):
        N = NT - 4 * (grp + 1) + NT
        g(f"s_waitcnt vmcnt({N})")
        if grp == 0: stamp(3)
        ts = list(range(4 * grp, 4 * grp + 4))
        qk_group(ts, [vK + 4 * t for t in ts], [vS + t for t in ts])
    stamp(4)
    if o.proto == "poll":
        g(f"s_cmp_lg_u32 s{sW}, 0")
        g("s_cbranch_scc1 L_nosig")
        g(f"s_lshl_b32 s{sT0}, s{sHK}, 2")
        g(f"v_mov_b32 v{vT0}, s{sT0}")
        g(f"v_mov_b32 v{vT1}, 1")
        g(f"s_mov_b64 exec, 1")
        g(f"global_atomic_add v{vT0}, v{vT1}, {sp(sDBG)} sc1")
        g(f"s_mov_b64 exec, -1")
        g.lab("L_nosig")
    g(f"v_max3_f32 v{vM}, v{vS}, v{vS+1}, v{vS+2}")
    t = 3
    while t < NT:
        if t + 1 < NT:
            g(f"v_max3_f32 v{vM}, v{vM}, v{vS+t}, v{vS+t+1}"); t += 2
        else:
            g(f"v_max_f32 v{vM}, v{vM}, v{vS+t}"); t += 1
    g(f"s_cmp_lg_u32 s{sSPEC}, 0")
    g("s_cbranch_scc1 L_notree1")
    qk_group([0], [vKt], [vStr])
    g(f"v_lshlrev_b32 v{vMk}, 16, v{vMk}")
    g(f"v_sub_f32 v{vMk}, 1.0, v{vMk}")
    g(f"s_mov_b32 s{sT0}, {hex(f2u(-1e9 * math.sqrt(128.0)))}")
    g(f"v_fma_f32 v{vStr}, v{vMk}, s{sT0}, v{vStr}")
    g(f"v_mov_b32 v{vT0}, 0xff800000")
    g(f"v_cmp_gt_u32 vcc, 16, v{vLane}")
    g("s_nop 1")
    g(f"v_cndmask_b32 v{vStr}, v{vT0}, v{vStr}, vcc")
    g(f"v_max_f32 v{vM}, v{vM}, v{vStr}")
    g.lab("L_notree1")
    def rowred(v, op):
        g(f"v_mov_b32 v{vT0}, v{v}")
        g("s_nop 1")
        g(f"v_permlane16_swap_b32 v{v}, v{vT0}")
        g(f"{op} v{v}, v{v}, v{vT0}")
        g(f"v_mov_b32 v{vT0}, v{v}")
        g("s_nop 1")
        g(f"v_permlane32_swap_b32 v{v}, v{vT0}")
        g(f"{op} v{v}, v{v}, v{vT0}")
    rowred(vM, "v_max_f32")
    g(f"v_lshl_add_u32 v{vT1}, v{vW}, 2, v{vLds}")
    g(f"ds_write_b32 v{vT1}, v{vM} offset:{LM}")
    g("s_waitcnt lgkmcnt(0)")
    g("s_barrier")
    for i in range(NW // 4):
        g(f"ds_read_b128 {vr(vD+4*i,4)}, v{vLds} offset:{LM+16*i}")
    g("s_waitcnt lgkmcnt(0)")
    g(f"v_max3_f32 v{vM}, v{vD}, v{vD+1}, v{vD+2}")
    t = 3
    while t < NW:
        if t + 1 < NW:
            g(f"v_max3_f32 v{vM}, v{vM}, v{vD+t}, v{vD+t+1}"); t += 2
        else:
            g(f"v_max_f32 v{vM}, v{vM}, v{vD+t}"); t += 1
    g(f"v_mul_f32 v{vM}, s{sC}, v{vM}")
    g(f"v_and_b32 v{vM}, -2, v{vM}")
    for t in range(NT):
        g(f"v_fma_f32 v{vS+t}, v{vS+t}, s{sC}, -v{vM}")
    for t in range(NT):
        g(f"v_exp_f32 v{vS+t}, v{vS+t}")
    g(f"v_add_f32 v{vL}, v{vS}, v{vS+1}")
    for t in range(2, NT):
        g(f"v_add_f32 v{vL}, v{vL}, v{vS+t}")
    for t in range(NT):
        g(f"v_cvt_pk_bf16_f32 v{vS+t}, v{vS+t}, v{vS+t}")
    for t in range(NT):
        for r in range(4):
            g(f"v_and_b32 v{vK+4*t+r}, v{vMask+r}, v{vS+t}")
    g(f"s_cmp_lg_u32 s{sSPEC}, 0")
    g("s_cbranch_scc1 L_notree2")
    g(f"v_fma_f32 v{vStr}, v{vStr}, s{sC}, -v{vM}")
    g(f"v_exp_f32 v{vStr}, v{vStr}")
    g("s_nop 0")
    g(f"v_add_f32 v{vL}, v{vL}, v{vStr}")
    g(f"v_cvt_pk_bf16_f32 v{vStr}, v{vStr}, v{vStr}")
    for r in range(4):
        g(f"v_and_b32 v{vKt+r}, v{vMask+r}, v{vStr}")
    g("s_nop 1")
    g(f"v_mfma_f32_16x16x32_bf16 {vr(vAcc,4)}, {vr(vKt,4)}, {vr(vVt,4)}, {vr(vAcc,4)}")
    g.lab("L_notree2")
    rowred(vL, "v_add_f32")
    g(f"ds_write_b32 v{vT1}, v{vL} offset:{LL}")
    g(f"v_lshlrev_b32 v{vT2}, 4, v0")
    g(f"v_lshlrev_b32 v{vT3}, 4, v{vLane}")
    stamp(5)
    for t in range(NT):
        g(f"s_waitcnt vmcnt({NT-1-t})")
        g(f"v_mfma_f32_16x16x32_bf16 {vr(vAcc,4)}, {vr(vK+4*t,4)}, {vr(vV+4*t,4)}, {vr(vAcc,4)}")
    stamp(6)
    g("s_nop 7")
    g(f"ds_write_b128 v{vT2}, {vr(vAcc,4)} offset:{LO}")
    g("s_waitcnt lgkmcnt(0)")
    g("s_barrier")
    g(f"s_cmp_lg_u32 s{sW}, 0")
    g("s_cbranch_scc1 L_nopub")
    g(f"v_lshrrev_b32 v{vT0}, 5, v{vLane}")
    g(f"v_lshlrev_b32 v{vT0}, {lg(4*NW)}, v{vT0}")
    for w in range(NW):
        g(f"ds_read_b128 {vr(vV+4*w,4)}, v{vT3} offset:{LO+1024*w}")
    for i in range(NW // 4):
        g(f"ds_read_b128 {vr(vD+4*i,4)}, v{vT0} offset:{LL+16*i}")
    for w in range(1, NW):
        g(f"s_waitcnt lgkmcnt({min(15, NW - 1 - w + NW // 4)})")
        g(f"v_pk_add_f32 {vr(vV,2)}, {vr(vV,2)}, {vr(vV+4*w,2)}")
        g(f"v_pk_add_f32 {vr(vV+2,2)}, {vr(vV+2,2)}, {vr(vV+4*w+2,2)}")
    for i in range(4):
        g(f"v_and_b32 v{vV+i}, -2, v{vV+i}")
    pf = "sc1" if o.proto != "2k" else ""
    g(f"global_store_dwordx4 v{vSl}, {vr(vV,4)}, {sp(sWS)} {pf}")
    g("s_waitcnt lgkmcnt(0)")
    g(f"v_add_f32 v{vL}, v{vD}, v{vD+1}")
    for i in range(2, NW):
        g(f"v_add_f32 v{vL}, v{vL}, v{vD+i}")
    g(f"v_and_b32 v{vL}, -2, v{vL}")
    g(f"s_lshl_b32 s{sT0}, s{sHK}, 4")
    g(f"s_add_u32 s{sT0}, s{sT0}, s{sSP}")
    g(f"s_lshl_b32 s{sT0}, s{sT0}, 11")
    g(f"v_lshrrev_b32 v{vT0}, 5, v{vLane}")
    g(f"v_lshl_add_u32 v{vT0}, v{vT0}, 3, s{sT0}")
    g(f"s_mov_b32 exec_lo, 1")
    g(f"s_mov_b32 exec_hi, 0x100")
    assert vL == vM + 1 and vM % 2 == 0
    g(f"global_store_dwordx2 v{vT0}, {vr(vM,2)}, {sp(sWS)} offset:1024 {pf}")
    g(f"s_mov_b64 exec, -1")
    if o.proto == "atomic":
        g("s_waitcnt vmcnt(0)")
        g(f"s_lshl_b32 s{sT0}, s{sHK}, 2")
        g(f"v_mov_b32 v{vT0}, s{sT0}")
        g(f"v_mov_b32 v{vT1}, 1")
        g(f"s_mov_b64 exec, 1")
        g(f"global_atomic_add v{vT1}, v{vT0}, v{vT1}, {sp(sDBG)} sc0 sc1")
        g(f"s_mov_b64 exec, -1")
        g("s_waitcnt vmcnt(0)")
        g(f"v_mov_b32 v{vT0}, 0")
        g(f"ds_write_b32 v{vT0}, v{vT1} offset:0") if False else None
        g(f"v_readfirstlane_b32 s{sT0}, v{vT1}")
        g(f"v_mov_b32 v{vT1}, s{sT0}") if False else None
        g("s_nop 1")
        g(f"v_mov_b32 v{vT1}, s{sT0}")
        g(f"ds_write_b32 v{vT0}, v{vT1} offset:128")
        g("s_waitcnt lgkmcnt(0)")
    g.lab("L_nopub")
    def consumer(g, NCW, check, label):
        vPa, vPb, vMa, vMb = vKo, vKo + 1, vKo + 2, vKo + 3
        vOa, vOb, vMLa, vMLb = vD, vD + 4, vD + 8, vD + 10
        vX = vD + 12
        g(f"s_lshl_b32 s{sT0}, s{sHK}, 15")
        g(f"v_lshrrev_b32 v{vT0}, 3, v{vLane}")
        g(f"v_lshl_add_u32 v{vT0}, v{vT0}, 11, s{sT0}")
        g(f"s_lshr_b32 s{sT1}, s{sW}, 2")
        g(f"s_lshl_b32 s{sT1}, s{sT1}, 3")
        g(f"v_add_u32 v{vMa}, s{sT1}, v{vT0}")
        g(f"v_add_u32 v{vMb}, 16384, v{vMa}")
        g(f"s_lshl_b32 s{sT1}, s{sW}, 7")
        g(f"v_and_b32 v{vT1}, 7, v{vLane}")
        g(f"v_lshl_add_u32 v{vT0}, v{vT1}, 4, v{vT0}")
        g(f"v_add_u32 v{vPa}, s{sT1}, v{vT0}")
        g(f"v_add_u32 v{vPb}, 16384, v{vPa}")
        g(f"v_bfe_u32 v{vT2}, v{vLane}, 4, 1")
        g(f"v_lshrrev_b32 v{vT3}, 5, v{vLane}")
        g(f"v_lshl_add_u32 v{vT2}, v{vT2}, 1, v{vT3}")
        g(f"v_lshl_add_u32 v{vT2}, v{vT1}, 2, v{vT2}")
        g(f"s_lshl_b32 s{sT0}, s{sHK}, 8")
        g(f"s_lshl_b32 s{sT1}, s{sW}, 5")
        g(f"s_add_u32 s{sT0}, s{sT0}, s{sT1}")
        g(f"v_add_lshl_u32 v{vQo}, v{vT2}, s{sT0}, 1")
        lf = "sc1" if o.proto != "2k" else ""
        if check:
            g(f"s_mov_b32 s{sCNT}, 0")
            g(f"s_lshl_b32 s{sT0}, s{sHK}, 2")
            g(f"v_mov_b32 v{vT0}, s{sT0}")
            g.lab(label + "_w0")
            g(f"global_load_dword v{vT1}, v{vT0}, {sp(sDBG)} sc1")
            g(f"s_add_u32 s{sCNT}, s{sCNT}, 1")
            g(f"s_cmp_ge_u32 s{sCNT}, {o.spin}")
            g(f"s_cbranch_scc1 {label}_poll")
            g("s_waitcnt vmcnt(0)")
            g(f"v_cmp_gt_u32 vcc, 16, v{vT1}")
            g(f"s_cbranch_vccnz {label}_w0")
            g.lab(label + "_poll")
        g(f"global_load_dwordx4 {vr(vOa,4)}, v{vPa}, {sp(sWS)} {lf}")
        g(f"global_load_dwordx4 {vr(vOb,4)}, v{vPb}, {sp(sWS)} {lf}")
        g(f"global_load_dwordx2 {vr(vMLa,2)}, v{vMa}, {sp(sWS)} offset:1024 {lf}")
        g(f"global_load_dwordx2 {vr(vMLb,2)}, v{vMb}, {sp(sWS)} offset:1024 {lf}")
        if check:
            g(f"s_add_u32 s{sCNT}, s{sCNT}, 1")
            g(f"s_cmp_ge_u32 s{sCNT}, {o.spin}")
        g("s_waitcnt vmcnt(0)")
        if check:
            g(f"s_cbranch_scc1 {label}_go")
            g(f"v_or3_b32 v{vT0}, v{vD}, v{vD+1}, v{vD+2}")
            g(f"v_or3_b32 v{vT1}, v{vD+3}, v{vD+4}, v{vD+5}")
            g(f"v_or3_b32 v{vT0}, v{vT0}, v{vD+6}, v{vD+7}")
            g(f"v_or3_b32 v{vT1}, v{vT1}, v{vD+8}, v{vD+9}")
            g(f"v_or3_b32 v{vT0}, v{vT0}, v{vD+10}, v{vD+11}")
            g(f"v_or_b32 v{vT0}, v{vT0}, v{vT1}")
            g(f"v_and_b32 v{vT0}, 1, v{vT0}")
            g(f"v_cmp_ne_u32 vcc, 0, v{vT0}")
            g(f"s_cbranch_vccnz {label}_poll")
            g.lab(label + "_go")
        g(f"v_max_f32 v{vM}, v{vMLa}, v{vMLb}")
        g("s_nop 1")
        g(f"v_max_f32_dpp v{vM}, v{vM}, v{vM} row_ror:8 row_mask:0xf bank_mask:0xf")
        rowred(vM, "v_max_f32")
        g(f"v_sub_f32 v{vMLa}, v{vMLa}, v{vM}")
        g(f"v_sub_f32 v{vMLb}, v{vMLb}, v{vM}")
        g(f"v_exp_f32 v{vMLa}, v{vMLa}")
        g(f"v_exp_f32 v{vMLb}, v{vMLb}")
        g("s_nop 0")
        g(f"v_mul_f32 v{vL}, v{vMLa}, v{vMLa+1}")
        for i in range(4):
            g(f"v_mul_f32 v{vOa+i}, v{vMLa}, v{vOa+i}")
        g(f"v_fmac_f32 v{vL}, v{vMLb}, v{vMLb+1}")
        for i in range(4):
            g(f"v_fmac_f32 v{vOa+i}, v{vMLb}, v{vOb+i}")
        g(f"v_add_f32_dpp v{vL}, v{vL}, v{vL} row_ror:8 row_mask:0xf bank_mask:0xf")
        g("s_nop 0")
        g(f"v_permlane32_swap_b32 v{vOa}, v{vOa+1}")
        g(f"v_permlane32_swap_b32 v{vOa+2}, v{vOa+3}")
        g(f"v_add_f32 v{vOa}, v{vOa}, v{vOa+1}")
        g(f"v_add_f32 v{vOa+2}, v{vOa+2}, v{vOa+3}")
        rowred(vL, "v_add_f32")
        g(f"v_permlane16_swap_b32 v{vOa}, v{vOa+2}")
        g(f"v_rcp_f32 v{vL}, v{vL}")
        g(f"v_add_f32 v{vOa}, v{vOa}, v{vOa+2}")
        g("s_nop 1")
        g(f"v_add_f32_dpp v{vOa}, v{vOa}, v{vOa} row_ror:8 row_mask:0xf bank_mask:0xf")
        g(f"v_mul_f32 v{vOa}, v{vOa}, v{vL}")
        g(f"v_cvt_pk_bf16_f32 v{vOa}, v{vOa}, v{vOa}")
        g(f"global_store_short v{vQo}, v{vOa}, {sp(sOUT)}")
    def dump_stamps():
        if not o.diag: return
        stamp(7)
        g(f"s_lshl_b32 s{sT0}, s2, {lg(NW)}")
        g(f"s_add_u32 s{sT0}, s{sT0}, s{sW}")
        g(f"s_lshl_b32 s{sT0}, s{sT0}, 6")
        g(f"s_add_u32 s{sT0}, s{sT0}, 0x1000000")
        g(f"v_mov_b32 v{vT0}, s{sT0}")
        g("s_waitcnt lgkmcnt(0)")
        for i in range(8):
            g(f"v_mov_b32 v{vV+i}, s{sST+2*i}")
        g(f"s_getreg_b32 s{sT1}, hwreg(HW_REG_XCC_ID)")
        g(f"v_mov_b32 v{vV+8}, s{sT1}")
        g(f"s_getreg_b32 s{sT1}, hwreg(HW_REG_HW_ID)")
        g(f"v_mov_b32 v{vV+9}, s{sT1}")
        g(f"v_mov_b32 v{vV+10}, s{sCNT}")
        g(f"v_mov_b32 v{vV+11}, 0")
        g(f"s_mov_b64 exec, 1")
        g(f"global_store_dwordx4 v{vT0}, {vr(vV,4)}, {sp(sWS)}")
        g(f"global_store_dwordx4 v{vT0}, {vr(vV+4,4)}, {sp(sWS)} offset:16")
        g(f"global_store_dwordx4 v{vT0}, {vr(vV+8,4)}, {sp(sWS)} offset:32")
    if o.diag:
        g(f"s_mov_b32 s{sCNT}, 0")
    if o.proto == "poll":
        g(f"s_cmp_lg_u32 s{sSP}, {o.cons}")
        g("s_cbranch_scc1 L_fin")
        if NW > 8:
            g(f"s_cmp_ge_u32 s{sW}, 8")
            g("s_cbranch_scc1 L_fin")
        assert NW >= 8
        consumer(g, 8, True, "L_c")
    elif o.proto == "atomic":
        g("s_barrier")
        g(f"v_mov_b32 v{vT0}, 0")
        g(f"ds_read_b32 v{vT1}, v{vT0} offset:128")
        g("s_waitcnt lgkmcnt(0)")
        g(f"v_cmp_ne_u32 vcc, 15, v{vT1}")
        g("s_cbranch_vccnz L_fin")
        if NW > 8:
            g(f"s_cmp_ge_u32 s{sW}, 8")
            g("s_cbranch_scc1 L_fin")
        assert NW >= 8
        consumer(g, 8, False, "L_c")
    g.lab("L_fin")
    dump_stamps()
    g.lab("L_end")
    g("s_endpgm")
    body1 = g.text()
    lds = max(LO + 1024 * NW, o.lds)
    nvg = max(nv, o.minv)
    out = HEADER
    def desc(name, nvg):
        return f""".amdhsa_kernel {name}
  .amdhsa_next_free_vgpr {nvg}
  .amdhsa_next_free_sgpr 64
  .amdhsa_accum_offset {(nvg+3)//4*4}
  .amdhsa_group_segment_fixed_size 0
  .amdhsa_kernarg_size 72
  .amdhsa_user_sgpr_count 2
  .amdhsa_user_sgpr_kernarg_segment_ptr 1
  .amdhsa_system_sgpr_workgroup_id_x 1
  .amdhsa_float_denorm_mode_32 3
.end_amdhsa_kernel
"""
    if o.proto == "2k":
        out += f"; @launch kernel={NAME}_kernel grid=(256,1,1) block=({64*NW},1,1) lds={lds}\n"
        out += f"; @launch kernel=combine_kernel grid=(16,1,1) block=(512,1,1) lds=0\n"
    else:
        out += f"; @launch grid=(256,1,1) block=({64*NW},1,1) lds={lds}\n"
    out += f""".amdgcn_target "amdgcn-amd-amdhsa--gfx950"
.text
.globl {NAME}_kernel
.p2align 8
.type {NAME}_kernel,@function
{NAME}_kernel:
""" + body1
    if o.proto == "2k":
        g2 = G()
        g = g2
        g2("s_cmp_ge_u32 s2, 16")
        g2("s_cbranch_scc1 L2_end")
        g2(f"s_load_dwordx2 s[16:17], s[0:1], 48")
        g2(f"s_load_dwordx2 s[20:21], s[0:1], 64")
        g2(f"s_mov_b32 s{sHK}, s2")
        g2(f"v_and_b32 v{vLane}, 63, v0")
        g2(f"v_lshrrev_b32 v{vW}, 6, v0")
        g2("s_nop 0")
        g2(f"v_readfirstlane_b32 s{sW}, v{vW}")
        g2("s_waitcnt lgkmcnt(0)")
        def rowred(v, op):
            g2(f"v_mov_b32 v{vT0}, v{v}")
            g2("s_nop 1")
            g2(f"v_permlane16_swap_b32 v{v}, v{vT0}")
            g2(f"{op} v{v}, v{v}, v{vT0}")
            g2(f"v_mov_b32 v{vT0}, v{v}")
            g2("s_nop 1")
            g2(f"v_permlane32_swap_b32 v{v}, v{vT0}")
            g2(f"{op} v{v}, v{v}, v{vT0}")
        consumer(g2, 8, False, "L2_c")
        g2.lab("L2_end")
        g2("s_endpgm")
        out += f""".globl combine_kernel
.p2align 8
.type combine_kernel,@function
combine_kernel:
""" + g2.text()
    out += ".section .rodata,\"a\"\n.p2align 6\n" + desc(NAME + "_kernel", nvg)
    if o.proto == "2k":
        out += ".p2align 6\n" + desc("combine_kernel", 72)
    return out

def parse(argv):
    p = argparse.ArgumentParser()
    p.add_argument("--nw", type=int, default=8)
    p.add_argument("--kflags", default="")
    p.add_argument("--vflags", default="")
    p.add_argument("--pattern", default="wave")
    p.add_argument("--map", default="xcd")
    p.add_argument("--proto", default="poll")
    p.add_argument("--cons", type=int, default=0)
    p.add_argument("--spin", type=int, default=200000)
    p.add_argument("--lds", type=int, default=0)
    p.add_argument("--minv", type=int, default=0)
    p.add_argument("--diag", type=int, default=0)
    p.add_argument("-o", default="-")
    return p.parse_args(argv)

if __name__ == "__main__":
    o = parse(sys.argv[1:])
    s = gen(o)
    if o.o == "-":
        sys.stdout.write(s)
    else:
        open(o.o, "w").write(s)
```

```python
import struct, sys, math, argparse

NAME = "standalone__tree_speculative_verify_tree_attention_over_candidate_token_tree__decode"

def f2u(x):
    return struct.unpack("<I", struct.pack("<f", x))[0]

HEADER = """; Kernarg layout for this problem (72 bytes, ptrs only, base s[0:1]):
"""

class G:
    def __init__(self):
        self.l = []
    def __call__(self, s):
        self.l.append("    " + s)
    def lab(self, s):
        self.l.append(s + ":")
    def c(self, s):
        self.l.append("    ; " + s)
    def text(self):
        return "\n".join(self.l) + "\n"

def vr(a, n=1):
    return f"v{a}" if n == 1 else f"v[{a}:{a+n-1}]"

def gen(o):
    NW = o.nw
    NT = 128 // NW
    kf = o.kflags.replace("_", " ")
    vf = o.vflags.replace("_", " ")
    C = math.log2(math.e) / math.sqrt(128.0)
    g = G()
    sQ, sK, sV, sKT, sVT, sMK, sOUT, sDBG, sWS = 4, 6, 8, 10, 12, 14, 16, 18, 20
    sHK, sSP, sW, sT0, sT1, sC, sSPEC, sCNT = 22, 23, 24, 25, 26, 27, 28, 29
    sST = 32
    def sp(a): return f"s[{a}:{a+1}]"
    vLane, vW, vCh, vT0, vT1, vT2, vT3 = 1, 2, 3, 4, 5, 6, 7
    nA = (NT + 7) // 8 if o.pattern == "wave" else None
    vQo = 8
    vSl = 9
    vM, vL, vStr, vLds, vMk = 10, 11, 12, 13, 14
    vKo = 16
    vVo = 24
    vQ = 32
    vMask = 36
    vAcc = 40
    vKt = 44
    vVt = 48
    vD = 52
    vS = 68
    vK = (vS + NT + 3) // 4 * 4
    vV = vK + 4 * NT
    nv = vV + 4 * NT
    stamps = []
    def stamp(i):
        if o.diag:
            g(f"s_memrealtime s[{sST+2*i}:{sST+2*i+1}]")
            stamps.append(i)

    g("s_cmp_ge_u32 s2, 256")
    g("s_cbranch_scc1 L_end")
    if o.pin:
        g("s_memrealtime s[50:51]")
    g(f"s_load_dwordx16 s[4:19], s[0:1], 0")
    g(f"s_load_dwordx2 s[20:21], s[0:1], 64")
    stamp(0)
    if o.map == "xcd":
        g(f"s_and_b32 s{sHK}, s2, 15")
        g(f"s_lshr_b32 s{sSP}, s2, 4")
    else:
        g(f"s_and_b32 s{sSP}, s2, 15")
        g(f"s_lshr_b32 s{sHK}, s2, 4")
    g(f"v_and_b32 v{vLane}, 63, v0")
    g(f"v_lshrrev_b32 v{vW}, 6, v0")
    g(f"s_lshl_b32 s{sT0}, s{sHK}, 21")
    lg = lambda x: int(math.log2(x))
    if o.pattern == "wave":
        sp_sh, w_sh = 17, 10 + lg(NT)
        toff = [t * 1024 for t in range(NT)]
    elif o.pattern == "wg":
        sp_sh, w_sh = 17, 10
        toff = [t * NW * 1024 for t in range(NT)]
    elif o.pattern == "wg4":
        sp_sh, w_sh = 17, 12
        toff = [(t // 4) * NW * 4096 + (t % 4) * 1024 for t in range(NT)]
    elif o.pattern == "head":
        sp_sh, w_sh = 10 + lg(NW), 10
        toff = [t * 16 * NW * 1024 for t in range(NT)]
    elif o.pattern == "head4":
        sp_sh, w_sh = 12 + lg(NW), 12
        toff = [(t // 4) * 16 * NW * 4096 + (t % 4) * 1024 for t in range(NT)]
    else:
        raise ValueError
    areg = []
    tmap = []
    for t in range(NT):
        for i, b in enumerate(areg):
            if -4096 <= toff[t] - b <= 4095:
                tmap.append((i, toff[t] - b)); break
        else:
            areg.append(toff[t] + 4096)
            tmap.append((len(areg) - 1, -4096))
    use_soff = len(areg) > 8
    g(f"s_lshl_b32 s{sT1}, s{sSP}, {sp_sh}")
    g(f"v_readfirstlane_b32 s{sW}, v{vW}")
    g(f"s_add_u32 s{sT0}, s{sT0}, s{sT1}")
    g(f"v_lshrrev_b32 v{vT0}, 4, v{vLane}")
    g(f"v_lshlrev_b32 v{vT0}, 6, v{vT0}")
    g(f"v_and_b32 v{vT1}, 3, v{vLane}")
    g(f"v_lshl_add_u32 v{vCh}, v{vT1}, 4, v{vT0}")
    g(f"v_bfe_u32 v{vT2}, v{vLane}, 2, 2")
    g(f"v_lshl_add_u32 v{vT2}, v{vT2}, 8, v{vCh}")
    g(f"v_lshl_add_u32 v{vT3}, v{vW}, {w_sh}, s{sT0}")
    g(f"v_add_u32 v{vT2}, v{vT2}, v{vT3}")
    g(f"v_lshl_add_u32 v{vT3}, v{vLane}, 4, v{vT3}")
    if not use_soff:
        for i, b in enumerate(areg):
            g(f"v_add_u32 v{vKo+i}, {b}, v{vT2}")
        for i, b in enumerate(areg):
            g(f"v_add_u32 v{vVo+i}, {b}, v{vT3}")
    else:
        g(f"v_mov_b32 v{vKo}, v{vT2}")
        g(f"v_mov_b32 v{vVo}, v{vT3}")
    g(f"v_bfe_u32 v{vT0}, v{vLane}, 3, 1")
    g(f"v_lshl_add_u32 v{vT0}, v{vT0}, 8, v{vCh}")
    g(f"s_lshl_b32 s{sT1}, s{sHK}, 9")
    g(f"v_add_u32 v{vQo}, s{sT1}, v{vT0}")
    g(f"s_xor_b32 s{sSPEC}, s{sW}, 1")
    g(f"s_or_b32 s{sSPEC}, s{sSPEC}, s{sSP}")
    g(f"s_cmp_lg_u32 s{sSPEC}, 0")
    g("s_waitcnt lgkmcnt(0)")
    stamp(1)
    g("s_cbranch_scc1 L_notree0")
    g(f"s_lshl_b32 s{sT1}, s{sHK}, 8")
    g(f"v_add_u32 v{vT0}, s{sT1}, v{vCh}")
    g(f"v_and_b32 v{vT1}, 15, v{vLane}")
    g(f"v_lshl_add_u32 v{vT1}, v{vT1}, 4, s{sT1}")
    g(f"v_mov_b32 v{vMk}, 0")
    g(f"global_load_dwordx4 {vr(vKt,4)}, v{vT0}, {sp(sKT)}")
    g(f"global_load_dwordx4 {vr(vVt,4)}, v{vT1}, {sp(sVT)}")
    g(f"global_load_ushort v{vMk}, v{vMk}, {sp(sMK)}")
    g.lab("L_notree0")
    g(f"global_load_dwordx4 {vr(vQ,4)}, v{vQo}, {sp(sQ)}")
    def loads(vdst, vo, sb, fl):
        if not use_soff:
            for t in range(NT):
                i, im = tmap[t]
                g(f"global_load_dwordx4 {vr(vdst+4*t,4)}, v{vo+i}, {sp(sb)} offset:{im} {fl}")
        else:
            cur = 0
            for t in range(NT):
                d = toff[t] - cur
                if not (-4096 <= d <= 4095):
                    g(f"s_add_u32 s{sb}, s{sb}, {d}")
                    g(f"s_addc_u32 s{sb+1}, s{sb+1}, 0")
                    cur = toff[t]; d = 0
                g(f"global_load_dwordx4 {vr(vdst+4*t,4)}, v{vo}, {sp(sb)} offset:{d} {fl}")
    loads(vK, vKo, sK, kf)
    g(f"s_lshl_b32 s{sT0}, s{sHK}, 4")
    g(f"s_add_u32 s{sT0}, s{sT0}, s{sSP}")
    g(f"s_lshl_b32 s{sT0}, s{sT0}, 11")
    g(f"v_lshrrev_b32 v{vT0}, 5, v{vLane}")
    g(f"v_lshl_add_u32 v{vSl}, v{vT0}, 9, s{sT0}")
    g(f"v_lshl_add_u32 v{vM}, v{vT0}, 3, s{sT0}")
    g(f"v_and_b32 v{vT1}, 15, v{vLane}")
    g(f"v_lshl_add_u32 v{vSl}, v{vT1}, 5, v{vSl}")
    g(f"v_bfe_u32 v{vT1}, v{vLane}, 4, 1")
    g(f"v_lshl_add_u32 v{vSl}, v{vT1}, 4, v{vSl}")
    if o.proto == "poll":
        g(f"s_cmp_lg_u32 s{sW}, 0")
        g("s_cbranch_scc1 L_noclear")
        for i in range(4):
            g(f"v_mov_b32 v{vD+i}, -1")
        g(f"global_store_dwordx4 v{vSl}, {vr(vD,4)}, {sp(sWS)} sc1")
        g(f"s_mov_b32 exec_lo, 1")
        g(f"s_mov_b32 exec_hi, 1")
        g(f"global_store_dwordx2 v{vM}, {vr(vD,2)}, {sp(sWS)} offset:1024 sc1")
        g(f"s_mov_b64 exec, -1")
        g.lab("L_noclear")
    loads(vV, vVo, sV, vf)
    stamp(2)
    g(f"v_and_b32 v{vT0}, 1, v{vLane}")
    g(f"v_lshlrev_b32 v{vT0}, 4, v{vT0}")
    g(f"s_mov_b32 s{sT0}, 0xffff")
    g(f"v_lshlrev_b32 v{vT0}, v{vT0}, s{sT0}")
    g(f"v_bfe_u32 v{vT1}, v{vLane}, 1, 2")
    for r in range(4):
        g(f"v_cmp_eq_u32 vcc, {r}, v{vT1}")
        g("s_nop 1")
        g(f"v_cndmask_b32 v{vMask+r}, 0, v{vT0}, vcc")
    g(f"s_mov_b32 s{sC}, {hex(f2u(C))}")
    for i in range(4):
        g(f"v_mov_b32 v{vAcc+i}, 0")
    g(f"v_bfe_u32 v{vT0}, v{vLane}, 3, 1")
    g(f"v_lshlrev_b32 v{vLds}, {lg(4*NW)}, v{vT0}")
    LM, LL, LO = 0, 8 * NW, 256
    def qk_group(tiles, srcs, dsts):
        for i, s_ in enumerate(srcs):
            g(f"v_mfma_f32_16x16x32_bf16 {vr(vD+4*i,4)}, {vr(s_,4)}, {vr(vQ,4)}, 0")
        n = len(srcs)
        g(f"s_nop {8 - n + 1}")
        for r in range(4):
            for i, d_ in enumerate(dsts):
                if r == 0:
                    g(f"v_mov_b32_dpp v{d_}, v{vD+4*i} quad_perm:[0,0,0,0] row_mask:0xf bank_mask:0xf")
                else:
                    g(f"v_add_f32_dpp v{d_}, v{vD+4*i+r}, v{d_} quad_perm:[{r},{r},{r},{r}] row_mask:0xf bank_mask:0xf")
            if n < 3:
                g(f"s_nop {2 - n}")
    for grp in range(NT // 4):
        N = NT - 4 * (grp + 1) + NT
        g(f"s_waitcnt vmcnt({N})")
        if grp == 0: stamp(3)
        ts = list(range(4 * grp, 4 * grp + 4))
        qk_group(ts, [vK + 4 * t for t in ts], [vS + t for t in ts])
    stamp(4)
    if o.proto == "poll":
        g(f"s_cmp_lg_u32 s{sW}, 0")
        g("s_cbranch_scc1 L_nosig")
        g(f"s_lshl_b32 s{sT0}, s{sHK}, 2")
        g(f"v_mov_b32 v{vT0}, s{sT0}")
        g(f"v_mov_b32 v{vT1}, 1")
        g(f"s_mov_b64 exec, 1")
        g(f"global_atomic_add v{vT0}, v{vT1}, {sp(sDBG)} sc1")
        g(f"s_mov_b64 exec, -1")
        g.lab("L_nosig")
    g(f"v_max3_f32 v{vM}, v{vS}, v{vS+1}, v{vS+2}")
    t = 3
    while t < NT:
        if t + 1 < NT:
            g(f"v_max3_f32 v{vM}, v{vM}, v{vS+t}, v{vS+t+1}"); t += 2
        else:
            g(f"v_max_f32 v{vM}, v{vM}, v{vS+t}"); t += 1
    g(f"s_cmp_lg_u32 s{sSPEC}, 0")
    g("s_cbranch_scc1 L_notree1")
    qk_group([0], [vKt], [vStr])
    g(f"v_lshlrev_b32 v{vMk}, 16, v{vMk}")
    g(f"v_sub_f32 v{vMk}, 1.0, v{vMk}")
    g(f"s_mov_b32 s{sT0}, {hex(f2u(-1e9 * math.sqrt(128.0)))}")
    g(f"v_fma_f32 v{vStr}, v{vMk}, s{sT0}, v{vStr}")
    g(f"v_mov_b32 v{vT0}, 0xff800000")
    g(f"v_cmp_gt_u32 vcc, 16, v{vLane}")
    g("s_nop 1")
    g(f"v_cndmask_b32 v{vStr}, v{vT0}, v{vStr}, vcc")
    g(f"v_max_f32 v{vM}, v{vM}, v{vStr}")
    g.lab("L_notree1")
    def rowred(v, op):
        g(f"v_mov_b32 v{vT0}, v{v}")
        g("s_nop 1")
        g(f"v_permlane16_swap_b32 v{v}, v{vT0}")
        g(f"{op} v{v}, v{v}, v{vT0}")
        g(f"v_mov_b32 v{vT0}, v{v}")
        g("s_nop 1")
        g(f"v_permlane32_swap_b32 v{v}, v{vT0}")
        g(f"{op} v{v}, v{v}, v{vT0}")
    rowred(vM, "v_max_f32")
    g(f"v_lshl_add_u32 v{vT1}, v{vW}, 2, v{vLds}")
    g(f"ds_write_b32 v{vT1}, v{vM} offset:{LM}")
    g("s_waitcnt lgkmcnt(0)")
    g("s_barrier")
    for i in range(NW // 4):
        g(f"ds_read_b128 {vr(vD+4*i,4)}, v{vLds} offset:{LM+16*i}")
    g("s_waitcnt lgkmcnt(0)")
    g(f"v_max3_f32 v{vM}, v{vD}, v{vD+1}, v{vD+2}")
    t = 3
    while t < NW:
        if t + 1 < NW:
            g(f"v_max3_f32 v{vM}, v{vM}, v{vD+t}, v{vD+t+1}"); t += 2
        else:
            g(f"v_max_f32 v{vM}, v{vM}, v{vD+t}"); t += 1
    g(f"v_mul_f32 v{vM}, s{sC}, v{vM}")
    g(f"v_and_b32 v{vM}, -2, v{vM}")
    for t in range(NT):
        g(f"v_fma_f32 v{vS+t}, v{vS+t}, s{sC}, -v{vM}")
    for t in range(NT):
        g(f"v_exp_f32 v{vS+t}, v{vS+t}")
    g(f"v_add_f32 v{vL}, v{vS}, v{vS+1}")
    for t in range(2, NT):
        g(f"v_add_f32 v{vL}, v{vL}, v{vS+t}")
    for t in range(NT):
        g(f"v_cvt_pk_bf16_f32 v{vS+t}, v{vS+t}, v{vS+t}")
    for t in range(NT):
        for r in range(4):
            g(f"v_and_b32 v{vK+4*t+r}, v{vMask+r}, v{vS+t}")
    g(f"s_cmp_lg_u32 s{sSPEC}, 0")
    g("s_cbranch_scc1 L_notree2")
    g(f"v_fma_f32 v{vStr}, v{vStr}, s{sC}, -v{vM}")
    g(f"v_exp_f32 v{vStr}, v{vStr}")
    g("s_nop 0")
    g(f"v_add_f32 v{vL}, v{vL}, v{vStr}")
    g(f"v_cvt_pk_bf16_f32 v{vStr}, v{vStr}, v{vStr}")
    for r in range(4):
        g(f"v_and_b32 v{vKt+r}, v{vMask+r}, v{vStr}")
    g("s_nop 1")
    g(f"v_mfma_f32_16x16x32_bf16 {vr(vAcc,4)}, {vr(vKt,4)}, {vr(vVt,4)}, {vr(vAcc,4)}")
    g.lab("L_notree2")
    rowred(vL, "v_add_f32")
    g(f"ds_write_b32 v{vT1}, v{vL} offset:{LL}")
    g(f"v_lshlrev_b32 v{vT2}, 4, v0")
    g(f"v_lshlrev_b32 v{vT3}, 4, v{vLane}")
    stamp(5)
    for t in range(NT):
        g(f"s_waitcnt vmcnt({NT-1-t})")
        g(f"v_mfma_f32_16x16x32_bf16 {vr(vAcc,4)}, {vr(vK+4*t,4)}, {vr(vV+4*t,4)}, {vr(vAcc,4)}")
    stamp(6)
    g("s_nop 7")
    g(f"ds_write_b128 v{vT2}, {vr(vAcc,4)} offset:{LO}")
    g("s_waitcnt lgkmcnt(0)")
    g("s_barrier")
    g(f"s_cmp_lg_u32 s{sW}, 0")
    g("s_cbranch_scc1 L_nopub")
    g(f"v_lshrrev_b32 v{vT0}, 5, v{vLane}")
    g(f"v_lshlrev_b32 v{vT0}, {lg(4*NW)}, v{vT0}")
    for w in range(NW):
        g(f"ds_read_b128 {vr(vV+4*w,4)}, v{vT3} offset:{LO+1024*w}")
    for i in range(NW // 4):
        g(f"ds_read_b128 {vr(vD+4*i,4)}, v{vT0} offset:{LL+16*i}")
    for w in range(1, NW):
        g(f"s_waitcnt lgkmcnt({min(15, NW - 1 - w + NW // 4)})")
        g(f"v_pk_add_f32 {vr(vV,2)}, {vr(vV,2)}, {vr(vV+4*w,2)}")
        g(f"v_pk_add_f32 {vr(vV+2,2)}, {vr(vV+2,2)}, {vr(vV+4*w+2,2)}")
    for i in range(4):
        g(f"v_and_b32 v{vV+i}, -2, v{vV+i}")
    pf = "sc1" if o.proto != "2k" else ""
    g(f"global_store_dwordx4 v{vSl}, {vr(vV,4)}, {sp(sWS)} {pf}")
    g("s_waitcnt lgkmcnt(0)")
    g(f"v_add_f32 v{vL}, v{vD}, v{vD+1}")
    for i in range(2, NW):
        g(f"v_add_f32 v{vL}, v{vL}, v{vD+i}")
    g(f"v_and_b32 v{vL}, -2, v{vL}")
    g(f"s_lshl_b32 s{sT0}, s{sHK}, 4")
    g(f"s_add_u32 s{sT0}, s{sT0}, s{sSP}")
    g(f"s_lshl_b32 s{sT0}, s{sT0}, 11")
    g(f"v_lshrrev_b32 v{vT0}, 5, v{vLane}")
    g(f"v_lshl_add_u32 v{vT0}, v{vT0}, 3, s{sT0}")
    g(f"s_mov_b32 exec_lo, 1")
    g(f"s_mov_b32 exec_hi, 0x100")
    assert vL == vM + 1 and vM % 2 == 0
    g(f"global_store_dwordx2 v{vT0}, {vr(vM,2)}, {sp(sWS)} offset:1024 {pf}")
    g(f"s_mov_b64 exec, -1")
    if o.proto == "atomic":
        g("s_waitcnt vmcnt(0)")
        g(f"s_lshl_b32 s{sT0}, s{sHK}, 2")
        g(f"v_mov_b32 v{vT0}, s{sT0}")
        g(f"v_mov_b32 v{vT1}, 1")
        g(f"s_mov_b64 exec, 1")
        g(f"global_atomic_add v{vT1}, v{vT0}, v{vT1}, {sp(sDBG)} sc0 sc1")
        g(f"s_mov_b64 exec, -1")
        g("s_waitcnt vmcnt(0)")
        g(f"v_mov_b32 v{vT0}, 0")
        g(f"ds_write_b32 v{vT0}, v{vT1} offset:0") if False else None
        g(f"v_readfirstlane_b32 s{sT0}, v{vT1}")
        g(f"v_mov_b32 v{vT1}, s{sT0}") if False else None
        g("s_nop 1")
        g(f"v_mov_b32 v{vT1}, s{sT0}")
        g(f"ds_write_b32 v{vT0}, v{vT1} offset:128")
        g("s_waitcnt lgkmcnt(0)")
    g.lab("L_nopub")
    def consumer(g, NCW, check, label):
        vPa, vPb, vMa, vMb = vKo, vKo + 1, vKo + 2, vKo + 3
        vOa, vOb, vMLa, vMLb = vD, vD + 4, vD + 8, vD + 10
        vX = vD + 12
        g(f"s_lshl_b32 s{sT0}, s{sHK}, 15")
        g(f"v_lshrrev_b32 v{vT0}, 3, v{vLane}")
        g(f"v_lshl_add_u32 v{vT0}, v{vT0}, 11, s{sT0}")
        g(f"s_lshr_b32 s{sT1}, s{sW}, 2")
        g(f"s_lshl_b32 s{sT1}, s{sT1}, 3")
        g(f"v_add_u32 v{vMa}, s{sT1}, v{vT0}")
        g(f"v_add_u32 v{vMb}, 16384, v{vMa}")
        g(f"s_lshl_b32 s{sT1}, s{sW}, 7")
        g(f"v_and_b32 v{vT1}, 7, v{vLane}")
        g(f"v_lshl_add_u32 v{vT0}, v{vT1}, 4, v{vT0}")
        g(f"v_add_u32 v{vPa}, s{sT1}, v{vT0}")
        g(f"v_add_u32 v{vPb}, 16384, v{vPa}")
        g(f"v_bfe_u32 v{vT2}, v{vLane}, 4, 1")
        g(f"v_lshrrev_b32 v{vT3}, 5, v{vLane}")
        g(f"v_lshl_add_u32 v{vT2}, v{vT2}, 1, v{vT3}")
        g(f"v_lshl_add_u32 v{vT2}, v{vT1}, 2, v{vT2}")
        g(f"s_lshl_b32 s{sT0}, s{sHK}, 8")
        g(f"s_lshl_b32 s{sT1}, s{sW}, 5")
        g(f"s_add_u32 s{sT0}, s{sT0}, s{sT1}")
        g(f"v_add_lshl_u32 v{vQo}, v{vT2}, s{sT0}, 1")
        lf = "sc1" if o.proto != "2k" else ""
        if check:
            g(f"s_mov_b32 s{sCNT}, 0")
            g(f"s_lshl_b32 s{sT0}, s{sHK}, 2")
            g(f"v_mov_b32 v{vT0}, s{sT0}")
            g.lab(label + "_w0")
            g(f"global_load_dword v{vT1}, v{vT0}, {sp(sDBG)} sc1")
            g(f"s_add_u32 s{sCNT}, s{sCNT}, 1")
            g(f"s_cmp_ge_u32 s{sCNT}, {o.spin}")
            g(f"s_cbranch_scc1 {label}_poll")
            g("s_waitcnt vmcnt(0)")
            g(f"v_cmp_gt_u32 vcc, 16, v{vT1}")
            g(f"s_cbranch_vccnz {label}_w0")
            g.lab(label + "_poll")
        g(f"global_load_dwordx4 {vr(vOa,4)}, v{vPa}, {sp(sWS)} {lf}")
        g(f"global_load_dwordx4 {vr(vOb,4)}, v{vPb}, {sp(sWS)} {lf}")
        g(f"global_load_dwordx2 {vr(vMLa,2)}, v{vMa}, {sp(sWS)} offset:1024 {lf}")
        g(f"global_load_dwordx2 {vr(vMLb,2)}, v{vMb}, {sp(sWS)} offset:1024 {lf}")
        if check:
            g(f"s_add_u32 s{sCNT}, s{sCNT}, 1")
            g(f"s_cmp_ge_u32 s{sCNT}, {o.spin}")
        g("s_waitcnt vmcnt(0)")
        if check:
            g(f"s_cbranch_scc1 {label}_go")
            g(f"v_or3_b32 v{vT0}, v{vD}, v{vD+1}, v{vD+2}")
            g(f"v_or3_b32 v{vT1}, v{vD+3}, v{vD+4}, v{vD+5}")
            g(f"v_or3_b32 v{vT0}, v{vT0}, v{vD+6}, v{vD+7}")
            g(f"v_or3_b32 v{vT1}, v{vT1}, v{vD+8}, v{vD+9}")
            g(f"v_or3_b32 v{vT0}, v{vT0}, v{vD+10}, v{vD+11}")
            g(f"v_or_b32 v{vT0}, v{vT0}, v{vT1}")
            g(f"v_and_b32 v{vT0}, 1, v{vT0}")
            g(f"v_cmp_ne_u32 vcc, 0, v{vT0}")
            g(f"s_cbranch_vccnz {label}_poll")
            g.lab(label + "_go")
        g(f"v_max_f32 v{vM}, v{vMLa}, v{vMLb}")
        g("s_nop 1")
        g(f"v_max_f32_dpp v{vM}, v{vM}, v{vM} row_ror:8 row_mask:0xf bank_mask:0xf")
        rowred(vM, "v_max_f32")
        g(f"v_sub_f32 v{vMLa}, v{vMLa}, v{vM}")
        g(f"v_sub_f32 v{vMLb}, v{vMLb}, v{vM}")
        g(f"v_exp_f32 v{vMLa}, v{vMLa}")
        g(f"v_exp_f32 v{vMLb}, v{vMLb}")
        g("s_nop 0")
        g(f"v_mul_f32 v{vL}, v{vMLa}, v{vMLa+1}")
        for i in range(4):
            g(f"v_mul_f32 v{vOa+i}, v{vMLa}, v{vOa+i}")
        g(f"v_fmac_f32 v{vL}, v{vMLb}, v{vMLb+1}")
        for i in range(4):
            g(f"v_fmac_f32 v{vOa+i}, v{vMLb}, v{vOb+i}")
        g(f"v_add_f32_dpp v{vL}, v{vL}, v{vL} row_ror:8 row_mask:0xf bank_mask:0xf")
        g("s_nop 0")
        g(f"v_permlane32_swap_b32 v{vOa}, v{vOa+1}")
        g(f"v_permlane32_swap_b32 v{vOa+2}, v{vOa+3}")
        g(f"v_add_f32 v{vOa}, v{vOa}, v{vOa+1}")
        g(f"v_add_f32 v{vOa+2}, v{vOa+2}, v{vOa+3}")
        rowred(vL, "v_add_f32")
        g(f"v_permlane16_swap_b32 v{vOa}, v{vOa+2}")
        g(f"v_rcp_f32 v{vL}, v{vL}")
        g(f"v_add_f32 v{vOa}, v{vOa}, v{vOa+2}")
        g("s_nop 1")
        g(f"v_add_f32_dpp v{vOa}, v{vOa}, v{vOa} row_ror:8 row_mask:0xf bank_mask:0xf")
        g(f"v_mul_f32 v{vOa}, v{vOa}, v{vL}")
        g(f"v_cvt_pk_bf16_f32 v{vOa}, v{vOa}, v{vOa}")
        if o.pin:
            g.lab("L_pin")
            g("s_memrealtime s[52:53]")
            g("s_waitcnt lgkmcnt(0)")
            g("s_sub_u32 s52, s52, s50")
            g(f"s_cmp_lt_u32 s52, {o.pin}")
            g("s_cbranch_scc1 L_pin")
        g(f"global_store_short v{vQo}, v{vOa}, {sp(sOUT)}")
    def dump_stamps():
        if not o.diag: return
        stamp(7)
        g(f"s_lshl_b32 s{sT0}, s2, {lg(NW)}")
        g(f"s_add_u32 s{sT0}, s{sT0}, s{sW}")
        g(f"s_lshl_b32 s{sT0}, s{sT0}, 6")
        g(f"s_add_u32 s{sT0}, s{sT0}, 0x1000000")
        g(f"v_mov_b32 v{vT0}, s{sT0}")
        g("s_waitcnt lgkmcnt(0)")
        for i in range(8):
            g(f"v_mov_b32 v{vV+i}, s{sST+2*i}")
        g(f"s_getreg_b32 s{sT1}, hwreg(HW_REG_XCC_ID)")
        g(f"v_mov_b32 v{vV+8}, s{sT1}")
        g(f"s_getreg_b32 s{sT1}, hwreg(HW_REG_HW_ID)")
        g(f"v_mov_b32 v{vV+9}, s{sT1}")
        g(f"v_mov_b32 v{vV+10}, s{sCNT}")
        g(f"v_mov_b32 v{vV+11}, 0")
        g(f"s_mov_b64 exec, 1")
        g(f"global_store_dwordx4 v{vT0}, {vr(vV,4)}, {sp(sWS)}")
        g(f"global_store_dwordx4 v{vT0}, {vr(vV+4,4)}, {sp(sWS)} offset:16")
        g(f"global_store_dwordx4 v{vT0}, {vr(vV+8,4)}, {sp(sWS)} offset:32")
    if o.diag:
        g(f"s_mov_b32 s{sCNT}, 0")
    if o.proto == "poll":
        g(f"s_cmp_lg_u32 s{sSP}, {o.cons}")
        g("s_cbranch_scc1 L_fin")
        if NW > 8:
            g(f"s_cmp_ge_u32 s{sW}, 8")
            g("s_cbranch_scc1 L_fin")
        assert NW >= 8
        consumer(g, 8, True, "L_c")
    elif o.proto == "atomic":
        g("s_barrier")
        g(f"v_mov_b32 v{vT0}, 0")
        g(f"ds_read_b32 v{vT1}, v{vT0} offset:128")
        g("s_waitcnt lgkmcnt(0)")
        g(f"v_cmp_ne_u32 vcc, 15, v{vT1}")
        g("s_cbranch_vccnz L_fin")
        if NW > 8:
            g(f"s_cmp_ge_u32 s{sW}, 8")
            g("s_cbranch_scc1 L_fin")
        assert NW >= 8
        consumer(g, 8, False, "L_c")
    g.lab("L_fin")
    dump_stamps()
    g.lab("L_end")
    g("s_endpgm")
    body1 = g.text()
    lds = max(LO + 1024 * NW, o.lds)
    nvg = max(nv, o.minv)
    out = HEADER
    def desc(name, nvg):
        return f""".amdhsa_kernel {name}
  .amdhsa_next_free_vgpr {nvg}
  .amdhsa_next_free_sgpr 64
  .amdhsa_accum_offset {(nvg+3)//4*4}
  .amdhsa_group_segment_fixed_size 0
  .amdhsa_kernarg_size 72
  .amdhsa_user_sgpr_count 2
  .amdhsa_user_sgpr_kernarg_segment_ptr 1
  .amdhsa_system_sgpr_workgroup_id_x 1
  .amdhsa_float_denorm_mode_32 3
.end_amdhsa_kernel
"""
    if o.proto == "2k":
        out += f"; @launch kernel={NAME}_kernel grid=(256,1,1) block=({64*NW},1,1) lds={lds}\n"
        out += f"; @launch kernel=combine_kernel grid=(16,1,1) block=(512,1,1) lds=0\n"
    else:
        out += f"; @launch grid=(256,1,1) block=({64*NW},1,1) lds={lds}\n"
    out += f""".amdgcn_target "amdgcn-amd-amdhsa--gfx950"
.text
.globl {NAME}_kernel
.p2align 8
.type {NAME}_kernel,@function
{NAME}_kernel:
""" + body1
    if o.proto == "2k":
        g2 = G()
        g = g2
        g2("s_cmp_ge_u32 s2, 16")
        g2("s_cbranch_scc1 L2_end")
        g2(f"s_load_dwordx2 s[16:17], s[0:1], 48")
        g2(f"s_load_dwordx2 s[20:21], s[0:1], 64")
        g2(f"s_mov_b32 s{sHK}, s2")
        g2(f"v_and_b32 v{vLane}, 63, v0")
        g2(f"v_lshrrev_b32 v{vW}, 6, v0")
        g2("s_nop 0")
        g2(f"v_readfirstlane_b32 s{sW}, v{vW}")
        g2("s_waitcnt lgkmcnt(0)")
        def rowred(v, op):
            g2(f"v_mov_b32 v{vT0}, v{v}")
            g2("s_nop 1")
            g2(f"v_permlane16_swap_b32 v{v}, v{vT0}")
            g2(f"{op} v{v}, v{v}, v{vT0}")
            g2(f"v_mov_b32 v{vT0}, v{v}")
            g2("s_nop 1")
            g2(f"v_permlane32_swap_b32 v{v}, v{vT0}")
            g2(f"{op} v{v}, v{v}, v{vT0}")
        consumer(g2, 8, False, "L2_c")
        g2.lab("L2_end")
        g2("s_endpgm")
        out += f""".globl combine_kernel
.p2align 8
.type combine_kernel,@function
combine_kernel:
""" + g2.text()
    out += ".section .rodata,\"a\"\n.p2align 6\n" + desc(NAME + "_kernel", nvg)
    if o.proto == "2k":
        out += ".p2align 6\n" + desc("combine_kernel", 72)
    return out

def parse(argv):
    p = argparse.ArgumentParser()
    p.add_argument("--nw", type=int, default=8)
    p.add_argument("--kflags", default="")
    p.add_argument("--vflags", default="")
    p.add_argument("--pattern", default="wave")
    p.add_argument("--map", default="xcd")
    p.add_argument("--proto", default="poll")
    p.add_argument("--cons", type=int, default=0)
    p.add_argument("--spin", type=int, default=200000)
    p.add_argument("--lds", type=int, default=0)
    p.add_argument("--minv", type=int, default=0)
    p.add_argument("--diag", type=int, default=0)
    p.add_argument("--pin", type=int, default=0)
    p.add_argument("-o", default="-")
    return p.parse_args(argv)

if __name__ == "__main__":
    o = parse(sys.argv[1:])
    s = gen(o)
    if o.o == "-":
        sys.stdout.write(s)
    else:
        open(o.o, "w").write(s)
```

```python
import struct, sys, math, argparse
from gen import NAME, HEADER, G, vr, f2u

def gen(o):
    NW = 8
    NT = 128 // NW
    D = o.depth
    GK = o.gk
    lf = o.flags.replace("_", " ")
    polf = o.polf.replace("_", " ")
    C = math.log2(math.e) / math.sqrt(128.0)
    lg = lambda x: int(math.log2(x))
    g = G()
    sQ, sK, sV, sKT, sVT, sMK, sOUT, sDBG, sWS = 4, 6, 8, 10, 12, 14, 16, 18, 20
    sHK, sSP, sW, sT0, sT1, sC, sNAT, sCNT, sX, sO = 22, 23, 24, 25, 26, 27, 28, 29, 30, 31
    sST = 32
    sMo, sLo, sXC, sE0, sE1 = 48, 49, 54, 64, 66
    sRK, sRV = 56, 60
    def sp(a): return f"s[{a}:{a+1}]"
    def sq(a): return f"s[{a}:{a+3}]"
    vLane, vW, vCh, vT0, vT1, vT2, vT3 = 1, 2, 3, 4, 5, 6, 7
    vOo, vSl, vM, vL, vF, vLdsR, vLdsW, vFlag = 8, 9, 10, 11, 12, 13, 14, 15
    vKo, vVo, vMLo, vFa = 16, 17, 18, 19
    vPa, vPb, vMa, vMb = 20, 21, 22, 23
    vLO, vLR, vPr, vPa0, vMa0 = 24, 25, 26, 27, 40
    vQ, vMask, vAcc = 28, 32, 36
    vP = 44
    vD = 52
    nD = max(16, 8 * GK)
    vS = vD + nD
    vR = (vS + NT + 3) // 4 * 4
    nv = vR + 4 * D
    MLB = 0x40000
    DSH = 19
    DELTA = 1 << DSH
    LM, LO, LS = 0, 128, 1152
    def stamp(i, mode=1):
        if o.diag and (mode == o.diag or i in (0, 6, 7)): g(f"s_memrealtime s[{sST+2*i}:{sST+2*i+1}]")
    def dpp(dbase, dsts):
        n = len(dsts)
        for r in range(4):
            for i, d_ in enumerate(dsts):
                if r == 0:
                    g(f"v_mov_b32_dpp v{d_}, v{dbase+4*i} quad_perm:[0,0,0,0] row_mask:0xf bank_mask:0xf")
                else:
                    g(f"v_add_f32_dpp v{d_}, v{dbase+4*i+r}, v{d_} quad_perm:[{r},{r},{r},{r}] row_mask:0xf bank_mask:0xf")
            if n < 3 and r < 3:
                g(f"s_nop {2 - n}")
    def rowred(v, op, t=vT0):
        g(f"v_mov_b32 v{t}, v{v}")
        g("s_nop 1")
        g(f"v_permlane16_swap_b32 v{v}, v{t}")
        g(f"{op} v{v}, v{v}, v{t}")
        g(f"v_mov_b32 v{t}, v{v}")
        g("s_nop 1")
        g(f"v_permlane32_swap_b32 v{v}, v{t}")
        g(f"{op} v{v}, v{v}, v{t}")
    def red8(v, op):
        for c in ("row_half_mirror", "quad_perm:[1,0,3,2]", "quad_perm:[2,3,0,1]"):
            g("s_nop 1")
            g(f"{op}_dpp v{v}, v{v}, v{v} {c} row_mask:0xf bank_mask:0xf")
    def xpose_reduce(a):
        g(f"v_permlane32_swap_b32 v{a}, v{a+1}")
        g(f"v_permlane32_swap_b32 v{a+2}, v{a+3}")
        g(f"v_add_f32 v{a}, v{a}, v{a+1}")
        g(f"v_add_f32 v{a+2}, v{a+2}, v{a+3}")
        g("s_nop 1")
        g(f"v_permlane16_swap_b32 v{a}, v{a+2}")
        g(f"v_add_f32 v{a}, v{a}, v{a+2}")
        g("s_nop 1")
        g(f"v_add_f32_dpp v{a}, v{a}, v{a} row_ror:8 row_mask:0xf bank_mask:0xf")

    g("s_cmp_ge_u32 s2, 256")
    g("s_cbranch_scc1 L_end")
    g(f"s_load_dwordx16 s[4:19], s[0:1], 0")
    g(f"s_load_dwordx2 s[20:21], s[0:1], 64")
    if o.pin: g("s_memrealtime s[50:51]")
    stamp(0)
    if o.map == "xcd":
        g(f"s_and_b32 s{sHK}, s2, 15")
        g(f"s_lshr_b32 s{sSP}, s2, 4")
    else:
        g(f"s_and_b32 s{sSP}, s2, 15")
        g(f"s_lshr_b32 s{sHK}, s2, 4")
    g(f"v_and_b32 v{vLane}, 63, v0")
    g(f"v_lshrrev_b32 v{vW}, 6, v0")
    g(f"s_lshl_b32 s{sT0}, s{sHK}, 21")
    g(f"s_lshl_b32 s{sT1}, s{sSP}, 17")
    g(f"v_readfirstlane_b32 s{sW}, v{vW}")
    g(f"s_add_u32 s{sT0}, s{sT0}, s{sT1}")
    g(f"v_lshrrev_b32 v{vT0}, 4, v{vLane}")
    g(f"v_lshlrev_b32 v{vT0}, 6, v{vT0}")
    g(f"v_and_b32 v{vT1}, 3, v{vLane}")
    g(f"v_lshl_add_u32 v{vCh}, v{vT1}, 4, v{vT0}")
    g(f"v_bfe_u32 v{vT2}, v{vLane}, 2, 2")
    g(f"v_lshl_add_u32 v{vT2}, v{vT2}, 8, v{vCh}")
    g(f"v_lshl_add_u32 v{vT3}, v{vW}, 10, s{sT0}")
    g(f"v_add_u32 v{vKo}, v{vT2}, v{vT3}")
    g(f"v_lshl_add_u32 v{vVo}, v{vLane}, 4, v{vT3}")
    TS = 10 + lg(NW)
    if o.xs: g(f"s_lshl_b32 s{sX}, s{sSP}, {TS}")
    else:    g(f"s_mov_b32 s{sX}, 0")
    g(f"s_mov_b32 s{sRK+2}, 0x2000000")
    g(f"s_mov_b32 s{sRK+3}, 0x20000")
    g(f"s_mov_b32 s{sRV+2}, 0x2000000")
    g(f"s_mov_b32 s{sRV+3}, 0x20000")
    g(f"v_bfe_u32 v{vT1}, v{vLane}, 3, 1")
    g(f"v_lshl_add_u32 v{vT0}, v{vT1}, 8, v{vCh}")
    g(f"s_lshl_b32 s{sT1}, s{sHK}, 9")
    g(f"v_add_u32 v{vT0}, s{sT1}, v{vT0}")
    g(f"s_getreg_b32 s{sXC}, hwreg(HW_REG_XCC_ID, 0, 4)")
    g(f"s_add_u32 s{sXC}, s{sXC}, 1")
    g(f"s_mov_b32 s{sC}, {hex(f2u(C))}")
    g(f"s_lshl_b32 s{sT0}, s{sHK}, 4")
    g(f"v_mov_b32 v{vFa}, s{sT0}")
    g(f"s_mov_b32 s{sCNT}, 0")
    g(f"s_cmp_eq_u32 s{sW}, {NW}")
    g("s_cbranch_scc1 L_helper")
    g("s_waitcnt lgkmcnt(0)")
    g(f"s_mov_b32 s{sRK}, s{sK}")
    g(f"s_and_b32 s{sRK+1}, s{sK+1}, 0xffff")
    stamp(1)
    seq = []
    def issue():
        n = sum(1 for x in seq if isinstance(x, int))
        if n >= 2 * NT: return
        if n == o.flag_at:
            g(f"global_load_dword v{vFlag}, v{vFa}, {sp(sDBG)} sc1"); seq.append("flag")
        t = n % NT
        srd, vo = (sRK, vKo) if n < NT else (sRV, vVo)
        if t == 0:
            so = f"s{sX}"
        else:
            g(f"s_xor_b32 s{sO}, s{sX}, {hex(t << TS)}")
            so = f"s{sO}"
        g(f"buffer_load_dwordx4 {vr(vR + 4 * (n % D), 4)}, v{vo}, {sq(srd)}, {so} offen {lf}")
        seq.append(n)
    def wait_for(*items):
        i = max(seq.index(x) for x in items)
        g(f"s_waitcnt vmcnt({len(seq) - 1 - i})")
    issue()
    g(f"global_load_dwordx4 {vr(vQ,4)}, v{vT0}, {sp(sQ)}"); seq.append("q")
    for _ in range(D - 1): issue()
    g(f"s_mov_b32 s{sRV}, s{sV}")
    g(f"s_and_b32 s{sRV+1}, s{sV+1}, 0xffff")
    stamp(2)
    g(f"s_lshl_b32 s{sT0}, s{sHK}, 4")
    g(f"s_add_u32 s{sT0}, s{sT0}, s{sSP}")
    g(f"s_lshl_b32 s{sT1}, s{sT0}, 4")
    g(f"s_add_u32 s{sT1}, s{sT1}, {MLB}")
    g(f"v_lshl_add_u32 v{vMLo}, v{vT1}, 3, s{sT1}")
    g(f"v_lshlrev_b32 v{vLdsW}, 6, v{vT1}")
    g(f"v_lshl_add_u32 v{vLdsW}, v{vW}, 3, v{vLdsW}")
    g(f"v_and_b32 v{vT2}, 15, v{vLane}")
    g(f"v_lshlrev_b32 v{vLdsR}, 3, v{vT2}")
    g(f"s_lshl_b32 s{sT0}, s{sT0}, 10")
    g(f"s_lshl_b32 s{sT1}, s{sW}, 7")
    g(f"s_add_u32 s{sT0}, s{sT0}, s{sT1}")
    g(f"v_and_b32 v{vT1}, 7, v{vLane}")
    g(f"v_bfe_u32 v{vT2}, v{vLane}, 4, 1")
    g(f"v_lshrrev_b32 v{vT3}, 5, v{vLane}")
    g(f"v_lshl_add_u32 v{vT2}, v{vT2}, 1, v{vT3}")
    g(f"v_lshl_add_u32 v{vT3}, v{vT1}, 2, v{vT2}")
    g(f"v_lshl_add_u32 v{vSl}, v{vT3}, 2, s{sT0}")
    g(f"v_lshl_add_u32 v{vT3}, v{vT1}, 3, v{vT2}")
    g(f"s_lshr_b32 s{sT0}, s{sW}, 2")
    g(f"s_lshl_b32 s{sT0}, s{sT0}, 7")
    g(f"s_and_b32 s{sT1}, s{sW}, 1")
    g(f"s_lshl_b32 s{sT1}, s{sT1}, 6")
    g(f"s_add_u32 s{sT0}, s{sT0}, s{sT1}")
    g(f"s_and_b32 s{sT1}, s{sW}, 2")
    g(f"s_lshl_b32 s{sT1}, s{sT1}, 1")
    g(f"s_add_u32 s{sT0}, s{sT0}, s{sT1}")
    g(f"s_lshl_b32 s{sT1}, s{sHK}, 8")
    g(f"s_add_u32 s{sT0}, s{sT0}, s{sT1}")
    g(f"v_add_lshl_u32 v{vOo}, v{vT3}, s{sT0}, 1")
    g(f"v_lshrrev_b32 v{vPr}, 3, v{vLane}")
    g(f"s_lshl_b32 s{sT1}, s{sW}, 7")
    g(f"v_lshl_add_u32 v{vT1}, v{vT1}, 4, s{sT1}")
    g(f"v_mul_u32_u24 v{vLR}, {LS}, v{vPr}")
    g(f"v_add_u32 v{vLR}, v{vLR}, v{vT1}")
    g(f"v_mul_u32_u24 v{vLO}, {LS}, v{vW}")
    g(f"v_lshl_add_u32 v{vLO}, v{vLane}, 4, v{vLO}")
    g(f"s_lshl_b32 s{sT0}, s{sHK}, 14")
    g(f"v_lshl_add_u32 v{vT0}, v{vPr}, 10, s{sT0}")
    g(f"v_add_u32 v{vPa0}, v{vT0}, v{vT1}")
    g(f"v_mov_b32 v{vPa}, v{vPa0}")
    g(f"v_add_u32 v{vPb}, 8192, v{vPa0}")
    g(f"s_lshl_b32 s{sT0}, s{sHK}, 8")
    g(f"s_lshr_b32 s{sT1}, s{sW}, 2")
    g(f"s_lshl_b32 s{sT1}, s{sT1}, 3")
    g(f"s_mov_b32 m0, s{sT1}")
    g(f"s_add_u32 s{sT0}, s{sT0}, s{sT1}")
    g(f"s_add_u32 s{sT0}, s{sT0}, {MLB}")
    g(f"v_lshl_add_u32 v{vMa0}, v{vPr}, 4, s{sT0}")
    g(f"v_mov_b32 v{vMa}, v{vMa0}")
    g(f"v_add_u32 v{vMb}, 128, v{vMa0}")
    g(f"v_and_b32 v{vT0}, 1, v{vLane}")
    g(f"v_lshlrev_b32 v{vT0}, 4, v{vT0}")
    g(f"s_mov_b32 s{sT0}, 0xffff")
    g(f"v_lshlrev_b32 v{vT0}, v{vT0}, s{sT0}")
    g(f"v_bfe_u32 v{vT1}, v{vLane}, 1, 2")
    for r in range(4):
        g(f"v_cmp_eq_u32 vcc, {r}, v{vT1}")
        g(f"v_mov_b32 v{vAcc+r}, 0")
        g("s_nop 0")
        g(f"v_cndmask_b32 v{vMask+r}, 0, v{vT0}, vcc")
    NG = NT // GK
    for grp in range(NG):
        ts = list(range(GK * grp, GK * grp + GK))
        if grp == 0: wait_for(ts[-1], "q")
        else: wait_for(ts[-1])
        if grp == 0: stamp(3)
        db = vD + 4 * GK * (grp & 1)
        for i, t in enumerate(ts):
            g(f"v_mfma_f32_16x16x32_bf16 {vr(db+4*i,4)}, {vr(vR+4*(t % D),4)}, {vr(vQ,4)}, 0")
        for _ in ts: issue()
        if grp == 0 and GK == 1: g("s_nop 2")
        if grp > 0:
            dpp(vD + 4 * GK * ((grp - 1) & 1), [vS + t - GK for t in ts])
    pad = 8 - (GK + 4 * GK)
    if pad > 0: g(f"s_nop {pad}")
    dpp(vD + 4 * GK * ((NG - 1) & 1), [vS + t for t in range(NT - GK, NT)])
    stamp(4)
    g(f"v_max3_f32 v{vM}, v{vS}, v{vS+1}, v{vS+2}")
    t = 3
    while t < NT:
        if t + 1 < NT:
            g(f"v_max3_f32 v{vM}, v{vM}, v{vS+t}, v{vS+t+1}"); t += 2
        else:
            g(f"v_max_f32 v{vM}, v{vM}, v{vS+t}"); t += 1
    rowred(vM, "v_max_f32")
    g(f"v_mul_f32 v{vM}, s{sC}, v{vM}")
    g(f"v_and_b32 v{vM}, -2, v{vM}")
    for t in range(NT): g(f"v_fma_f32 v{vS+t}, v{vS+t}, s{sC}, -v{vM}")
    for t in range(NT): g(f"v_exp_f32 v{vS+t}, v{vS+t}")
    g(f"v_add_f32 v{vL}, v{vS}, v{vS+1}")
    g(f"v_add_f32 v{vT1}, v{vS+2}, v{vS+3}")
    for t in range(4, NT, 2):
        g(f"v_add_f32 v{vL}, v{vL}, v{vS+t}")
        g(f"v_add_f32 v{vT1}, v{vT1}, v{vS+t+1}")
    g(f"v_add_f32 v{vL}, v{vL}, v{vT1}")
    rowred(vL, "v_add_f32")
    assert vL == vM + 1 and vM % 2 == 0
    g(f"ds_write_b64 v{vLdsW}, {vr(vM,2)} offset:{LM}")
    g("s_waitcnt lgkmcnt(0)")
    g("s_barrier")
    g(f"ds_read_b64 {vr(vD,2)}, v{vLdsR} offset:{LM}")
    g(f"v_mov_b32 v{vF}, v{vM}")
    g("s_waitcnt lgkmcnt(0)")
    g(f"v_mov_b32 v{vM}, v{vD}")
    red8(vM, "v_max_f32")
    g(f"v_sub_f32 v{vD}, v{vD}, v{vM}")
    g(f"v_sub_f32 v{vF}, v{vF}, v{vM}")
    g(f"v_exp_f32 v{vD}, v{vD}")
    g(f"v_exp_f32 v{vF}, v{vF}")
    g(f"v_mul_f32 v{vL}, v{vD}, v{vD+1}")
    red8(vL, "v_add_f32")
    g(f"v_and_b32 v{vL}, -2, v{vL}")
    def flag_check():
        g(f"v_readfirstlane_b32 s{sNAT}, v{vFlag}")
        g(f"v_readlane_b32 s{sMo}, v{vM}, m0")
        g(f"v_readlane_b32 s{sLo}, v{vL}, m0")
        g(f"s_cmp_eq_u32 s{sNAT}, 0")
        g("s_cbranch_scc1 L_flagwait")
        g.lab("L_flagok")
        if o.force_slow:
            g(f"s_mov_b32 s{sNAT}, 1")
        else:
            g(f"s_xor_b32 s{sNAT}, s{sNAT}, s{sXC}")
        g(f"s_cmp_eq_u32 s{sSP}, {o.cons}")
        g(f"s_cselect_b32 s{sT0}, 1, s{sNAT}")
        g(f"s_or_b32 s{sT0}, s{sT0}, s{sW}")
        g("s_cbranch_scc1 L_noml")
        g(f"s_mov_b64 exec, 0x101")
        g(f"global_store_dwordx2 v{vMLo}, {vr(vM,2)}, {sp(sWS)}")
        g(f"s_mov_b64 exec, -1")
        g.lab("L_noml")
    def pbuild(t):
        g(f"v_mul_f32 v{vS+t}, v{vF}, v{vS+t}")
        g(f"v_cvt_pk_bf16_f32 v{vS+t}, v{vS+t}, v{vS+t}")
        for r in range(4):
            g(f"v_and_b32 v{vP+4*(t&1)+r}, v{vMask+r}, v{vS+t}")
    vOa, vOb, vMLa, vMLb, vAr = vD, vD + 4, vD + 8, vD + 10, vD + 12
    vG = vD + 13
    vOc = vAcc
    sOK = 55
    def vstep(t, pre_issue=None):
        g("s_nop 0")
        wait_for(NT + t)
        g(f"v_mfma_f32_16x16x32_bf16 {vr(vAcc,4)}, {vr(vP+4*(t&1),4)}, {vr(vR+4*((NT+t) % D),4)}, {vr(vAcc,4)}")
        if pre_issue: pre_issue()
        issue()
        if NT + t == max(o.flag_at, NT): flag_check()
        if t + 1 < NT: pbuild(t + 1)
    def ml_loads():
        g(f"global_load_dwordx2 {vr(vMLa,2)}, v{vMa}, {sp(sWS)} {polf}")
        g(f"global_load_dwordx2 {vr(vMLb,2)}, v{vMb}, {sp(sWS)} {polf}")
    def o_loads():
        g(f"global_load_dwordx4 {vr(vOa,4)}, v{vPa}, {sp(sWS)} {polf}")
        g(f"global_load_dwordx4 {vr(vOb,4)}, v{vPb}, {sp(sWS)} {polf}")
    def ml_check():
        g(f"v_or3_b32 v{vT0}, v{vMLa}, v{vMLa+1}, v{vMLb}")
        g(f"v_bitop3_b32 v{vT0}, v{vT0}, v{vMLb+1}, 1 bitop3:0xa8")
        g(f"v_cmp_ne_u32 vcc, 0, v{vT0}")
    def factors():
        g(f"v_max3_f32 v{vM}, v{vMLa}, v{vMLb}, s{sMo}")
        g("s_nop 1")
        g(f"v_max_f32_dpp v{vM}, v{vM}, v{vM} row_ror:8 row_mask:0xf bank_mask:0xf")
        rowred(vM, "v_max_f32")
        g(f"v_sub_f32 v{vMLa}, v{vMLa}, v{vM}")
        g(f"v_sub_f32 v{vMLb}, v{vMLb}, v{vM}")
        g(f"v_sub_f32 v{vG}, s{sMo}, v{vM}")
        g(f"v_exp_f32 v{vMLa}, v{vMLa}")
        g(f"v_exp_f32 v{vMLb}, v{vMLb}")
        g(f"v_exp_f32 v{vG}, v{vG}")
        g(f"v_mul_f32 v{vL}, v{vMLa}, v{vMLa+1}")
        g(f"v_fmac_f32 v{vL}, v{vMLb}, v{vMLb+1}")
        g("s_nop 1")
        g(f"v_add_f32_dpp v{vL}, v{vL}, v{vL} row_ror:8 row_mask:0xf bank_mask:0xf")
        rowred(vL, "v_add_f32")
        g(f"v_fmac_f32 v{vL}, s{sLo}, v{vG}")
        g(f"v_rcp_f32 v{vL}, v{vL}")
        g("s_nop 0")
        g(f"v_mul_f32 v{vG}, v{vG}, v{vL}")
        g(f"v_mul_f32 v{vMLa}, v{vMLa}, v{vL}")
        g(f"v_mul_f32 v{vMLb}, v{vMLb}, v{vL}")
    def exchange():
        g(f"ds_write_b128 v{vLO}, {vr(vAcc,4)} offset:{LO}")
        g("s_waitcnt lgkmcnt(0)")
        g("s_barrier")
        g(f"ds_read_b128 {vr(vOc,4)}, v{vLR} offset:{LO}")
        if o.diag == 2:
            stamp(1, 2); g("s_waitcnt lgkmcnt(0)")
            for i in (2, 3, 4, 5): g(f"s_mov_b32 s{sST+2*i}, s{sST+2}")
    pbuild(0)
    stamp(5)
    TSPLIT = NT - D - 1 - o.mlearly
    assert NT + TSPLIT > max(o.flag_at, NT)
    for t in range(TSPLIT): vstep(t)
    g(f"s_cmp_eq_u32 s{sSP}, {o.cons}")
    g("s_cbranch_scc1 L_cons")
    seq_split = list(seq)
    for t in range(TSPLIT, NT): vstep(t)
    stamp(6)
    g("s_nop 7")
    exchange()
    g(f"s_cmp_lg_u32 s{sNAT}, 0")
    g("s_waitcnt lgkmcnt(0)")
    xpose_reduce(vOc)
    g(f"v_and_b32 v{vOc}, -2, v{vOc}")
    g("s_cbranch_scc1 L_foreign")
    g(f"global_store_dword v{vSl}, v{vOc}, {sp(sWS)}")
    stamp(2, 2)
    if o.diag: g("s_branch L_fin")
    else: g("s_endpgm")
    def redirect():
        g(f"v_lshrrev_b32 v{vT0}, v{vPr}, v{vAr}")
        g(f"v_bfe_u32 v{vT1}, v{vT0}, 8, 1")
        g(f"v_and_b32 v{vT0}, 1, v{vT0}")
        g(f"v_lshl_add_u32 v{vPa}, v{vT0}, {DSH}, v{vPa0}")
        g(f"v_lshl_add_u32 v{vPb}, v{vT1}, {DSH}, v{vPa0}")
        g(f"v_add_u32 v{vPb}, 8192, v{vPb}")
        g(f"s_mul_i32 s{sT0}, s{sHK}, {16 * 112}")
        g(f"s_add_u32 s{sT0}, s{sT0}, {hex(DELTA)}")
        g(f"v_mul_u32_u24 v{vT2}, 112, v{vPr}")
        g(f"v_add_u32 v{vT2}, s{sT0}, v{vT2}")
        g(f"v_add_u32 v{vT3}, {8 * 112}, v{vT2}")
        g(f"v_mad_u32_u24 v{vMa}, v{vT0}, v{vT2}, v{vMa0}")
        g(f"v_mad_u32_u24 v{vMb}, v{vT1}, v{vT3}, v{vMa0}")
        g(f"v_add_u32 v{vMb}, 128, v{vMb}")
    g.lab("L_cons")
    seq[:] = seq_split
    def pre():
        ml_loads(); seq.extend(["mla", "mlb"])
    for t in range(TSPLIT, NT):
        if t == NT - 1 - o.mlearly:
            wait_for("mlb")
            ml_check()
            g(f"s_mov_b32 s{sOK}, 0")
            g("s_cbranch_vccnz L_nofac")
            factors()
            g(f"s_mov_b32 s{sOK}, 1")
            g.lab("L_nofac")
        vstep(t, pre if t == TSPLIT else None)
    stamp(6)
    o_loads()
    g(f"s_cmp_eq_u32 s{sOK}, 0")
    g("s_nop 4")
    exchange()
    g("s_cbranch_scc1 L_mlretry")
    g.lab("L_scale")
    g("s_waitcnt lgkmcnt(0)")
    for i in range(4):
        g(f"v_mul_f32 v{vOc+i}, v{vG}, v{vOc+i}")
    stamp(3, 2)
    g("s_branch L_check")
    g.lab("L_retry")
    if o.mask:
        g(f"s_mov_b64 exec, {sp(sE0)}")
    g(f"global_load_dwordx4 {vr(vOa,4)}, v{vPa}, {sp(sWS)} {polf}")
    if o.mask:
        g(f"s_mov_b64 exec, {sp(sE1)}")
    g(f"global_load_dwordx4 {vr(vOb,4)}, v{vPb}, {sp(sWS)} {polf}")
    if o.mask:
        g(f"s_mov_b64 exec, -1")
    g(f"s_add_u32 s{sCNT}, s{sCNT}, 1")
    g.lab("L_check")
    g(f"s_cmp_ge_u32 s{sCNT}, {o.spin}")
    g("s_waitcnt vmcnt(0)")
    g("s_cbranch_scc1 L_go")
    if o.mask:
        g(f"v_or3_b32 v{vT0}, v{vOa}, v{vOa+1}, v{vOa+2}")
        g(f"v_or3_b32 v{vT1}, v{vOb}, v{vOb+1}, v{vOb+2}")
        g(f"v_bitop3_b32 v{vT0}, v{vT0}, v{vOa+3}, 1 bitop3:0xa8")
        g(f"v_bitop3_b32 v{vT1}, v{vT1}, v{vOb+3}, 1 bitop3:0xa8")
        g(f"v_cmp_ne_u32 {sp(sE0)}, 0, v{vT0}")
        g(f"v_cmp_ne_u32 {sp(sE1)}, 0, v{vT1}")
        g("s_nop 0")
        g(f"s_or_b64 vcc, {sp(sE0)}, {sp(sE1)}")
        g(f"s_or_b32 s{sE0}, s{sE0}, 1")
        g(f"s_or_b32 s{sE1}, s{sE1}, 1")
        g("s_cbranch_vccnz L_retry")
    else:
        g(f"v_or3_b32 v{vT0}, v{vOa}, v{vOa+1}, v{vOa+2}")
        g(f"v_or3_b32 v{vT1}, v{vOb}, v{vOb+1}, v{vOb+2}")
        g(f"v_or3_b32 v{vT0}, v{vT0}, v{vOa+3}, v{vOb+3}")
        g(f"v_bitop3_b32 v{vT0}, v{vT0}, v{vT1}, 1 bitop3:0xa8")
        g(f"v_cmp_ne_u32 vcc, 0, v{vT0}")
        g("s_cbranch_vccnz L_retry")
    g.lab("L_go")
    stamp(4, 2)
    for i in range(4): g(f"v_fmac_f32 v{vOc+i}, v{vMLa}, v{vOa+i}")
    for i in range(4): g(f"v_fmac_f32 v{vOc+i}, v{vMLb}, v{vOb+i}")
    g("s_nop 0")
    xpose_reduce(vOc)
    g(f"v_cvt_pk_bf16_f32 v{vOc}, v{vOc}, v{vOc}")
    stamp(5, 2)
    if o.pin:
        g.lab("L_pin")
        g("s_memrealtime s[52:53]")
        g("s_waitcnt lgkmcnt(0)")
        g("s_sub_u32 s52, s52, s50")
        g(f"s_cmp_lt_u32 s52, {o.pin}")
        g("s_cbranch_scc1 L_pin")
    g(f"global_store_short v{vOo}, v{vOc}, {sp(sOUT)} {o.outf.replace('_', ' ')}")
    g.lab("L_fin")
    if o.diag:
        stamp(7)
        g(f"s_lshl_b32 s{sT0}, s2, {lg(NW)}")
        g(f"s_add_u32 s{sT0}, s{sT0}, s{sW}")
        g(f"s_lshl_b32 s{sT0}, s{sT0}, 6")
        g(f"s_add_u32 s{sT0}, s{sT0}, 0x1000000")
        g(f"v_mov_b32 v{vT0}, s{sT0}")
        g("s_waitcnt lgkmcnt(0)")
        vX = vS
        for i in range(8):
            g(f"v_mov_b32 v{vX+i}, s{sST+2*i}")
        g(f"s_getreg_b32 s{sT1}, hwreg(HW_REG_XCC_ID)")
        g(f"v_mov_b32 v{vX+8}, s{sT1}")
        g(f"s_getreg_b32 s{sT1}, hwreg(HW_REG_HW_ID)")
        g(f"v_mov_b32 v{vX+9}, s{sT1}")
        g(f"v_mov_b32 v{vX+10}, s{sCNT}")
        g(f"v_mov_b32 v{vX+11}, s{sSP}")
        g(f"s_mov_b64 exec, 1")
        g(f"global_store_dwordx4 v{vT0}, {vr(vX,4)}, {sp(sWS)}")
        g(f"global_store_dwordx4 v{vT0}, {vr(vX+4,4)}, {sp(sWS)} offset:16")
        g(f"global_store_dwordx4 v{vT0}, {vr(vX+8,4)}, {sp(sWS)} offset:32")
    g.lab("L_end")
    g("s_endpgm")
    g.lab("L_mlretry")
    g(f"global_load_dword v{vAr}, v{vFa}, {sp(sDBG)} offset:4 sc1")
    ml_loads()
    g(f"s_add_u32 s{sCNT}, s{sCNT}, 1")
    g(f"s_cmp_ge_u32 s{sCNT}, {o.spin}")
    g("s_waitcnt vmcnt(0)")
    g("s_cbranch_scc1 L_mlok")
    ml_check()
    g("s_cbranch_vccz L_mlok")
    redirect()
    g("s_branch L_mlretry")
    g.lab("L_mlok")
    o_loads()
    factors()
    g("s_branch L_scale")
    g.lab("L_foreign")
    g(f"v_add_u32 v{vSl}, {hex(DELTA)}, v{vSl}")
    g(f"s_lshl_b32 s{sT0}, s{sHK}, 4")
    g(f"s_add_u32 s{sT0}, s{sT0}, s{sSP}")
    g(f"s_mul_i32 s{sT0}, s{sT0}, 112")
    g(f"s_add_u32 s{sT0}, s{sT0}, {hex(DELTA)}")
    g(f"v_add_u32 v{vMLo}, s{sT0}, v{vMLo}")
    g(f"global_store_dword v{vSl}, v{vOc}, {sp(sWS)} sc1")
    g(f"s_cmp_lg_u32 s{sW}, 0")
    g("s_cbranch_scc1 L_foreign1")
    g(f"s_mov_b64 exec, 0x101")
    g(f"global_store_dwordx2 v{vMLo}, {vr(vM,2)}, {sp(sWS)} sc1")
    g(f"s_mov_b64 exec, -1")
    g.lab("L_foreign1")
    g("s_waitcnt vmcnt(0)")
    g("s_barrier")
    g("s_cbranch_scc1 L_fin")
    g(f"s_lshl_b32 s{sT0}, 1, s{sSP}")
    g(f"v_mov_b32 v{vT0}, s{sT0}")
    g(f"s_mov_b64 exec, 1")
    g(f"global_atomic_or v{vFa}, v{vT0}, {sp(sDBG)} offset:4 sc1")
    g(f"s_mov_b64 exec, -1")
    g("s_branch L_fin")
    g.lab("L_flagwait")
    g(f"global_load_dword v{vFlag}, v{vFa}, {sp(sDBG)} sc1")
    g(f"s_add_u32 s{sCNT}, s{sCNT}, 1")
    g(f"s_cmp_ge_u32 s{sCNT}, {o.spin}")
    g("s_waitcnt vmcnt(0)")
    g("s_cbranch_scc1 L_flagok")
    g(f"v_readfirstlane_b32 s{sNAT}, v{vFlag}")
    g("s_nop 0")
    g(f"s_cmp_eq_u32 s{sNAT}, 0")
    g("s_cbranch_scc1 L_flagwait")
    g("s_branch L_flagok")
    g.lab("L_helper")
    if o.hprio: g(f"s_setprio {o.hprio}")
    hK, hV, hMk, hA, hB, hC, hO = vR, vR + 4, vR + 6, vR + 7, vR + 8, vR + 9, vR + 12
    def hstamp(i):
        if o.diag: g(f"s_memrealtime s[{sST+2*i}:{sST+2*i+1}]")
    g(f"s_lshl_b32 s{sT0}, s{sHK}, 4")
    g(f"s_add_u32 s{sT0}, s{sT0}, s{sSP}")
    g(f"s_lshl_b32 s{sT0}, s{sT0}, 10")
    g(f"v_lshl_add_u32 v{hA}, v{vLane}, 7, s{sT0}")
    g(f"v_lshl_add_u32 v{hB}, v{vLane}, 4, s{sT0}")
    for i in range(4): g(f"v_mov_b32 v{vP+i}, -1")
    g(f"s_cmp_eq_u32 s{sSP}, {o.cons}")
    g("s_cbranch_scc1 L_helper1")
    g("s_waitcnt lgkmcnt(0)")
    g(f"global_store_dwordx4 v{hB}, {vr(vP,4)}, {sp(sWS)}")
    if o.pre:
        g(f"s_mov_b64 exec, 0xff")
        g(f"global_load_dword v{vD+4}, v{hA}, {sp(sWS)} sc1")
    g("s_waitcnt vmcnt(0)")
    g("s_barrier")
    g("s_endpgm")
    g.lab("L_helper1")
    g(f"s_lshl_b32 s{sT1}, s{sHK}, 8")
    g(f"s_add_u32 s{sT0}, s{sT1}, {MLB}")
    g(f"v_lshl_add_u32 v{hC}, v{vLane}, 4, s{sT0}")
    g(f"v_writelane_b32 v{hA}, s{sT0}, 8")
    g(f"s_add_u32 s{sT0}, s{sT0}, 128")
    g(f"v_writelane_b32 v{hA}, s{sT0}, 9")
    g(f"v_and_b32 v{vT2}, 15, v{vLane}")
    g(f"v_add_u32 v{vT3}, s{sT1}, v{vCh}")
    g(f"v_lshl_add_u32 v{vT2}, v{vT2}, 4, s{sT1}")
    g(f"v_bfe_u32 v{hMk}, v{vLane}, 4, 1")
    g(f"v_lshl_add_u32 v{vT2}, v{hMk}, 3, v{vT2}")
    g(f"v_mov_b32 v{hMk}, 0")
    g(f"v_mov_b32 v{vF}, s{sXC}")
    g("s_waitcnt lgkmcnt(0)")
    hstamp(1)
    g(f"s_mov_b64 exec, 0xffff")
    g(f"global_store_dwordx4 v{hC}, {vr(vP,4)}, {sp(sWS)}")
    g(f"s_mov_b64 exec, -1")
    g(f"global_store_dwordx4 v{hB}, {vr(vP,4)}, {sp(sWS)}")
    g(f"global_load_dwordx4 {vr(vQ,4)}, v{vT0}, {sp(sQ)}")
    g(f"global_load_dwordx4 {vr(hK,4)}, v{vT3}, {sp(sKT)}")
    g(f"global_load_dwordx2 {vr(hV,2)}, v{vT2}, {sp(sVT)}")
    if o.touch:
        g(f"global_load_dword v{vD+7}, v{hMk}, {sp(sOUT)}")
    g(f"global_load_ushort v{hMk}, v{hMk}, {sp(sMK)}")
    if o.pre:
        g(f"s_mov_b64 exec, 0x3ff")
        g(f"global_load_dword v{vD+4}, v{hA}, {sp(sWS)} sc1")
    g(f"s_mov_b64 exec, 1")
    hstamp(2)
    g(f"s_waitcnt vmcnt(0)")
    hstamp(3)
    g(f"global_store_dword v{vFa}, v{vF}, {sp(sDBG)} sc1")
    g(f"s_mov_b64 exec, -1")
    hstamp(4); hstamp(5)
    g(f"v_mfma_f32_16x16x32_bf16 {vr(vD,4)}, {vr(hK,4)}, {vr(vQ,4)}, 0")
    g(f"v_lshlrev_b32 v{hO}, 16, v{hV}")
    g(f"v_and_b32 v{hO+1}, 0xffff0000, v{hV}")
    g(f"v_lshlrev_b32 v{hO+2}, 16, v{hV+1}")
    g(f"v_and_b32 v{hO+3}, 0xffff0000, v{hV+1}")
    g(f"global_store_dwordx4 v{hB}, {vr(hO,4)}, {sp(sWS)}")
    g(f"v_lshlrev_b32 v{hMk}, 16, v{hMk}")
    g(f"v_sub_f32 v{hMk}, 1.0, v{hMk}")
    g(f"s_mov_b32 s{sT0}, {hex(f2u(-1e9 * math.sqrt(128.0)))}")
    g(f"v_mov_b32 v{vL}, 1.0")
    dpp(vD, [vM])
    g(f"v_fma_f32 v{vM}, v{hMk}, s{sT0}, v{vM}")
    g(f"v_mul_f32 v{vM}, s{sC}, v{vM}")
    g(f"v_and_b32 v{vM}, -2, v{vM}")
    g(f"s_add_u32 s{sT1}, s{sT1}, {MLB + 16 * o.cons}")
    g(f"v_lshl_add_u32 v{vT2}, v{vT1}, 3, s{sT1}")
    g(f"s_mov_b64 exec, 0x101")
    g(f"global_store_dwordx2 v{vT2}, {vr(vM,2)}, {sp(sWS)}")
    if o.diag:
        g("s_waitcnt vmcnt(0)")
        hstamp(6); hstamp(7)
        g(f"s_lshl_b32 s{sT0}, s{sHK}, 6")
        g(f"s_add_u32 s{sT0}, s{sT0}, 0x1100000")
        g(f"v_mov_b32 v{vT0}, s{sT0}")
        g("s_waitcnt lgkmcnt(0)")
        for i in range(8): g(f"v_mov_b32 v{vS+i}, s{sST+2*i}")
        g(f"s_mov_b64 exec, 1")
        g(f"global_store_dwordx4 v{vT0}, {vr(vS,4)}, {sp(sWS)}")
        g(f"global_store_dwordx4 v{vT0}, {vr(vS+4,4)}, {sp(sWS)} offset:16")
    g("s_endpgm")
    nv = max(nv, vR + 16)
    lds = max(LO + LS * NW, o.lds)
    nvg = max(nv, o.minv)
    return HEADER + f"; @launch grid=(256,1,1) block=({64*(NW+1)},1,1) lds={lds}\n" + f""".amdgcn_target "amdgcn-amd-amdhsa--gfx950"
.text
.globl {NAME}_kernel
.p2align 8
.type {NAME}_kernel,@function
{NAME}_kernel:
""" + g.text() + f""".section .rodata,"a"
.p2align 6
.amdhsa_kernel {NAME}_kernel
  .amdhsa_next_free_vgpr {nvg}
  .amdhsa_next_free_sgpr 72
  .amdhsa_accum_offset {(nvg+3)//4*4}
  .amdhsa_group_segment_fixed_size 0
  .amdhsa_kernarg_size 72
  .amdhsa_user_sgpr_count 2
  .amdhsa_user_sgpr_kernarg_segment_ptr 1
  .amdhsa_system_sgpr_workgroup_id_x 1
  .amdhsa_float_denorm_mode_32 3
.end_amdhsa_kernel
"""

def parse(argv):
    p = argparse.ArgumentParser()
    p.add_argument("--depth", type=int, default=6)
    p.add_argument("--gk", type=int, default=2)
    p.add_argument("--flags", default="nt")
    p.add_argument("--polf", default="sc1")
    p.add_argument("--outf", default="")
    p.add_argument("--map", default="xcd")
    p.add_argument("--xs", type=int, default=1)
    p.add_argument("--cons", type=int, default=0)
    p.add_argument("--flag_at", type=int, default=22)
    p.add_argument("--mlearly", type=int, default=0)
    p.add_argument("--hskip", default="")
    p.add_argument("--hdelay", type=int, default=0)
    p.add_argument("--hprio", type=int, default=3)
    p.add_argument("--touch", type=int, default=1)
    p.add_argument("--pre", type=int, default=1)
    p.add_argument("--mask", type=int, default=0)
    p.add_argument("--force_slow", type=int, default=0)
    p.add_argument("--spin", type=int, default=200000)
    p.add_argument("--lds", type=int, default=0)
    p.add_argument("--minv", type=int, default=136)
    p.add_argument("--diag", type=int, default=0)
    p.add_argument("--pin", type=int, default=0)
    p.add_argument("-o", default="-")
    return p.parse_args(argv)

if __name__ == "__main__":
    o = parse(sys.argv[1:])
    s = gen(o)
    if o.o == "-": sys.stdout.write(s)
    else: open(o.o, "w").write(s)
```

```python
import struct, sys, math, argparse
from gen import NAME, HEADER, G, vr, f2u

def gen(o):
    NW = 8
    NT = 128 // NW
    D = o.depth
    GK = o.gk
    lf = o.flags.replace("_", " ")
    polf = o.polf.replace("_", " ")
    C = math.log2(math.e) / math.sqrt(128.0)
    lg = lambda x: int(math.log2(x))
    g = G()
    sQ, sK, sV, sKT, sVT, sMK, sOUT, sDBG, sWS = 4, 6, 8, 10, 12, 14, 16, 18, 20
    sHK, sSP, sW, sT0, sT1, sC, sNAT, sCNT, sX, sO = 22, 23, 24, 25, 26, 27, 28, 29, 30, 31
    sST = 32
    sMo, sLo, sXC, sE0, sE1 = 48, 49, 54, 64, 66
    sRK, sRV = 56, 60
    def sp(a): return f"s[{a}:{a+1}]"
    def sq(a): return f"s[{a}:{a+3}]"
    vLane, vW, vCh, vT0, vT1, vT2, vT3 = 1, 2, 3, 4, 5, 6, 7
    vOo, vSl, vM, vL, vF, vLdsR, vLdsW, vFlag = 8, 9, 10, 11, 12, 13, 14, 15
    vKo, vVo, vMLo, vFa = 16, 17, 18, 19
    vPa, vPb, vMa, vMb = 20, 21, 22, 23
    vLO, vLR, vPr, vPa0, vMa0 = 24, 25, 26, 27, 40
    vQ, vMask, vAcc = 28, 32, 36
    vP = 44
    vD = 52
    nD = max(16, 8 * GK)
    vS = vD + nD
    vR = (vS + NT + 3) // 4 * 4
    nv = vR + 4 * D
    MLB = 0x40000
    DSH = 19
    DELTA = 1 << DSH
    LM, LO, LS = 0, 128, 1152
    def stamp(i, mode=1):
        if o.amp and (i, mode) == tuple(int(x) for x in o.amp.split(",")):
            g(f"s_memrealtime s[68:69]")
        if o.diag and (mode == o.diag or i in (0, 6, 7)): g(f"s_memrealtime s[{sST+2*i}:{sST+2*i+1}]")
    def dpp(dbase, dsts):
        n = len(dsts)
        for r in range(4):
            for i, d_ in enumerate(dsts):
                if r == 0:
                    g(f"v_mov_b32_dpp v{d_}, v{dbase+4*i} quad_perm:[0,0,0,0] row_mask:0xf bank_mask:0xf")
                else:
                    g(f"v_add_f32_dpp v{d_}, v{dbase+4*i+r}, v{d_} quad_perm:[{r},{r},{r},{r}] row_mask:0xf bank_mask:0xf")
            if n < 3 and r < 3:
                g(f"s_nop {2 - n}")
    def rowred(v, op, t=vT0):
        g(f"v_mov_b32 v{t}, v{v}")
        g("s_nop 1")
        g(f"v_permlane16_swap_b32 v{v}, v{t}")
        g(f"{op} v{v}, v{v}, v{t}")
        g(f"v_mov_b32 v{t}, v{v}")
        g("s_nop 1")
        g(f"v_permlane32_swap_b32 v{v}, v{t}")
        g(f"{op} v{v}, v{v}, v{t}")
    def red8(v, op):
        for c in ("row_half_mirror", "quad_perm:[1,0,3,2]", "quad_perm:[2,3,0,1]"):
            g("s_nop 1")
            g(f"{op}_dpp v{v}, v{v}, v{v} {c} row_mask:0xf bank_mask:0xf")
    def xpose_reduce(a):
        g(f"v_permlane32_swap_b32 v{a}, v{a+1}")
        g(f"v_permlane32_swap_b32 v{a+2}, v{a+3}")
        g(f"v_add_f32 v{a}, v{a}, v{a+1}")
        g(f"v_add_f32 v{a+2}, v{a+2}, v{a+3}")
        g("s_nop 1")
        g(f"v_permlane16_swap_b32 v{a}, v{a+2}")
        g(f"v_add_f32 v{a}, v{a}, v{a+2}")
        g("s_nop 1")
        g(f"v_add_f32_dpp v{a}, v{a}, v{a} row_ror:8 row_mask:0xf bank_mask:0xf")

    g("s_cmp_ge_u32 s2, 256")
    g("s_cbranch_scc1 L_end")
    g(f"s_load_dwordx16 s[4:19], s[0:1], 0")
    g(f"s_load_dwordx2 s[20:21], s[0:1], 64")
    if o.pin: g("s_memrealtime s[50:51]")
    stamp(0)
    if o.map == "xcd":
        g(f"s_and_b32 s{sHK}, s2, 15")
        g(f"s_lshr_b32 s{sSP}, s2, 4")
    else:
        g(f"s_and_b32 s{sSP}, s2, 15")
        g(f"s_lshr_b32 s{sHK}, s2, 4")
    g(f"v_and_b32 v{vLane}, 63, v0")
    g(f"v_lshrrev_b32 v{vW}, 6, v0")
    g(f"s_lshl_b32 s{sT0}, s{sHK}, 21")
    g(f"s_lshl_b32 s{sT1}, s{sSP}, 17")
    g(f"v_readfirstlane_b32 s{sW}, v{vW}")
    g(f"s_add_u32 s{sT0}, s{sT0}, s{sT1}")
    g(f"v_lshrrev_b32 v{vT0}, 4, v{vLane}")
    g(f"v_lshlrev_b32 v{vT0}, 6, v{vT0}")
    g(f"v_and_b32 v{vT1}, 3, v{vLane}")
    g(f"v_lshl_add_u32 v{vCh}, v{vT1}, 4, v{vT0}")
    g(f"v_bfe_u32 v{vT2}, v{vLane}, 2, 2")
    g(f"v_lshl_add_u32 v{vT2}, v{vT2}, 8, v{vCh}")
    g(f"v_lshl_add_u32 v{vT3}, v{vW}, 10, s{sT0}")
    g(f"v_add_u32 v{vKo}, v{vT2}, v{vT3}")
    g(f"v_lshl_add_u32 v{vVo}, v{vLane}, 4, v{vT3}")
    TS = 10 + lg(NW)
    if o.xs: g(f"s_lshl_b32 s{sX}, s{sSP}, {TS}")
    else:    g(f"s_mov_b32 s{sX}, 0")
    g(f"s_mov_b32 s{sRK+2}, 0x2000000")
    g(f"s_mov_b32 s{sRK+3}, 0x20000")
    g(f"s_mov_b32 s{sRV+2}, 0x2000000")
    g(f"s_mov_b32 s{sRV+3}, 0x20000")
    g(f"v_bfe_u32 v{vT1}, v{vLane}, 3, 1")
    g(f"v_lshl_add_u32 v{vT0}, v{vT1}, 8, v{vCh}")
    g(f"s_lshl_b32 s{sT1}, s{sHK}, 9")
    g(f"v_add_u32 v{vT0}, s{sT1}, v{vT0}")
    g(f"s_getreg_b32 s{sXC}, hwreg(HW_REG_XCC_ID, 0, 4)")
    g(f"s_add_u32 s{sXC}, s{sXC}, 1")
    g(f"s_mov_b32 s{sC}, {hex(f2u(C))}")
    g(f"s_lshl_b32 s{sT0}, s{sHK}, 4")
    g(f"v_mov_b32 v{vFa}, s{sT0}")
    g(f"s_mov_b32 s{sCNT}, 0")
    g(f"s_cmp_eq_u32 s{sW}, {NW}")
    g("s_cbranch_scc1 L_helper")
    g("s_waitcnt lgkmcnt(0)")
    g(f"s_mov_b32 s{sRK}, s{sK}")
    g(f"s_and_b32 s{sRK+1}, s{sK+1}, 0xffff")
    stamp(1)
    seq = []
    def issue():
        n = sum(1 for x in seq if isinstance(x, int))
        if n >= 2 * NT: return
        if n == o.flag_at:
            g(f"global_load_dword v{vFlag}, v{vFa}, {sp(sDBG)} sc1"); seq.append("flag")
        t = n % NT
        srd, vo = (sRK, vKo) if n < NT else (sRV, vVo)
        if t == 0:
            so = f"s{sX}"
        else:
            g(f"s_xor_b32 s{sO}, s{sX}, {hex(t << TS)}")
            so = f"s{sO}"
        g(f"buffer_load_dwordx4 {vr(vR + 4 * (n % D), 4)}, v{vo}, {sq(srd)}, {so} offen {lf}")
        seq.append(n)
    def wait_for(*items):
        i = max(seq.index(x) for x in items)
        g(f"s_waitcnt vmcnt({len(seq) - 1 - i})")
    issue()
    g(f"global_load_dwordx4 {vr(vQ,4)}, v{vT0}, {sp(sQ)}"); seq.append("q")
    for _ in range(D - 1): issue()
    g(f"s_mov_b32 s{sRV}, s{sV}")
    g(f"s_and_b32 s{sRV+1}, s{sV+1}, 0xffff")
    stamp(2)
    g(f"s_lshl_b32 s{sT0}, s{sHK}, 4")
    g(f"s_add_u32 s{sT0}, s{sT0}, s{sSP}")
    g(f"s_lshl_b32 s{sT1}, s{sT0}, 4")
    g(f"s_add_u32 s{sT1}, s{sT1}, {MLB}")
    g(f"v_lshl_add_u32 v{vMLo}, v{vT1}, 3, s{sT1}")
    g(f"v_lshlrev_b32 v{vLdsW}, 6, v{vT1}")
    g(f"v_lshl_add_u32 v{vLdsW}, v{vW}, 3, v{vLdsW}")
    g(f"v_and_b32 v{vT2}, 15, v{vLane}")
    g(f"v_lshlrev_b32 v{vLdsR}, 3, v{vT2}")
    g(f"s_lshl_b32 s{sT0}, s{sT0}, 10")
    g(f"s_lshl_b32 s{sT1}, s{sW}, 7")
    g(f"s_add_u32 s{sT0}, s{sT0}, s{sT1}")
    g(f"v_and_b32 v{vT1}, 7, v{vLane}")
    g(f"v_bfe_u32 v{vT2}, v{vLane}, 4, 1")
    g(f"v_lshrrev_b32 v{vT3}, 5, v{vLane}")
    g(f"v_lshl_add_u32 v{vT2}, v{vT2}, 1, v{vT3}")
    g(f"v_lshl_add_u32 v{vT3}, v{vT1}, 2, v{vT2}")
    g(f"v_lshl_add_u32 v{vSl}, v{vT3}, 2, s{sT0}")
    g(f"v_lshl_add_u32 v{vT3}, v{vT1}, 3, v{vT2}")
    g(f"s_lshr_b32 s{sT0}, s{sW}, 2")
    g(f"s_lshl_b32 s{sT0}, s{sT0}, 7")
    g(f"s_and_b32 s{sT1}, s{sW}, 1")
    g(f"s_lshl_b32 s{sT1}, s{sT1}, 6")
    g(f"s_add_u32 s{sT0}, s{sT0}, s{sT1}")
    g(f"s_and_b32 s{sT1}, s{sW}, 2")
    g(f"s_lshl_b32 s{sT1}, s{sT1}, 1")
    g(f"s_add_u32 s{sT0}, s{sT0}, s{sT1}")
    g(f"s_lshl_b32 s{sT1}, s{sHK}, 8")
    g(f"s_add_u32 s{sT0}, s{sT0}, s{sT1}")
    g(f"v_add_lshl_u32 v{vOo}, v{vT3}, s{sT0}, 1")
    g(f"v_lshrrev_b32 v{vPr}, 3, v{vLane}")
    g(f"s_lshl_b32 s{sT1}, s{sW}, 7")
    g(f"v_lshl_add_u32 v{vT1}, v{vT1}, 4, s{sT1}")
    g(f"v_mul_u32_u24 v{vLR}, {LS}, v{vPr}")
    g(f"v_add_u32 v{vLR}, v{vLR}, v{vT1}")
    g(f"v_mul_u32_u24 v{vLO}, {LS}, v{vW}")
    g(f"v_lshl_add_u32 v{vLO}, v{vLane}, 4, v{vLO}")
    g(f"s_lshl_b32 s{sT0}, s{sHK}, 14")
    g(f"v_lshl_add_u32 v{vT0}, v{vPr}, 10, s{sT0}")
    g(f"v_add_u32 v{vPa0}, v{vT0}, v{vT1}")
    g(f"v_mov_b32 v{vPa}, v{vPa0}")
    g(f"v_add_u32 v{vPb}, 8192, v{vPa0}")
    g(f"s_lshl_b32 s{sT0}, s{sHK}, 8")
    g(f"s_lshr_b32 s{sT1}, s{sW}, 2")
    g(f"s_lshl_b32 s{sT1}, s{sT1}, 3")
    g(f"s_mov_b32 m0, s{sT1}")
    g(f"s_add_u32 s{sT0}, s{sT0}, s{sT1}")
    g(f"s_add_u32 s{sT0}, s{sT0}, {MLB}")
    g(f"v_lshl_add_u32 v{vMa0}, v{vPr}, 4, s{sT0}")
    g(f"v_mov_b32 v{vMa}, v{vMa0}")
    g(f"v_add_u32 v{vMb}, 128, v{vMa0}")
    g(f"v_and_b32 v{vT0}, 1, v{vLane}")
    g(f"v_lshlrev_b32 v{vT0}, 4, v{vT0}")
    g(f"s_mov_b32 s{sT0}, 0xffff")
    g(f"v_lshlrev_b32 v{vT0}, v{vT0}, s{sT0}")
    g(f"v_bfe_u32 v{vT1}, v{vLane}, 1, 2")
    for r in range(4):
        g(f"v_cmp_eq_u32 vcc, {r}, v{vT1}")
        g(f"v_mov_b32 v{vAcc+r}, 0")
        g("s_nop 0")
        g(f"v_cndmask_b32 v{vMask+r}, 0, v{vT0}, vcc")
    NG = NT // GK
    for grp in range(NG):
        ts = list(range(GK * grp, GK * grp + GK))
        if grp == 0: wait_for(ts[-1], "q")
        else: wait_for(ts[-1])
        if grp == 0: stamp(3)
        db = vD + 4 * GK * (grp & 1)
        for i, t in enumerate(ts):
            g(f"v_mfma_f32_16x16x32_bf16 {vr(db+4*i,4)}, {vr(vR+4*(t % D),4)}, {vr(vQ,4)}, 0")
        for _ in ts: issue()
        if grp == 0 and GK == 1: g("s_nop 2")
        if grp > 0:
            dpp(vD + 4 * GK * ((grp - 1) & 1), [vS + t - GK for t in ts])
    pad = 8 - (GK + 4 * GK)
    if pad > 0: g(f"s_nop {pad}")
    dpp(vD + 4 * GK * ((NG - 1) & 1), [vS + t for t in range(NT - GK, NT)])
    stamp(4)
    g(f"v_max3_f32 v{vM}, v{vS}, v{vS+1}, v{vS+2}")
    t = 3
    while t < NT:
        if t + 1 < NT:
            g(f"v_max3_f32 v{vM}, v{vM}, v{vS+t}, v{vS+t+1}"); t += 2
        else:
            g(f"v_max_f32 v{vM}, v{vM}, v{vS+t}"); t += 1
    rowred(vM, "v_max_f32")
    g(f"v_mul_f32 v{vM}, s{sC}, v{vM}")
    g(f"v_and_b32 v{vM}, -2, v{vM}")
    for t in range(NT): g(f"v_fma_f32 v{vS+t}, v{vS+t}, s{sC}, -v{vM}")
    for t in range(NT): g(f"v_exp_f32 v{vS+t}, v{vS+t}")
    g(f"v_add_f32 v{vL}, v{vS}, v{vS+1}")
    g(f"v_add_f32 v{vT1}, v{vS+2}, v{vS+3}")
    for t in range(4, NT, 2):
        g(f"v_add_f32 v{vL}, v{vL}, v{vS+t}")
        g(f"v_add_f32 v{vT1}, v{vT1}, v{vS+t+1}")
    g(f"v_add_f32 v{vL}, v{vL}, v{vT1}")
    rowred(vL, "v_add_f32")
    assert vL == vM + 1 and vM % 2 == 0
    g(f"ds_write_b64 v{vLdsW}, {vr(vM,2)} offset:{LM}")
    g("s_waitcnt lgkmcnt(0)")
    g("s_barrier")
    g(f"ds_read_b64 {vr(vD,2)}, v{vLdsR} offset:{LM}")
    g(f"v_mov_b32 v{vF}, v{vM}")
    g("s_waitcnt lgkmcnt(0)")
    g(f"v_mov_b32 v{vM}, v{vD}")
    red8(vM, "v_max_f32")
    g(f"v_sub_f32 v{vD}, v{vD}, v{vM}")
    g(f"v_sub_f32 v{vF}, v{vF}, v{vM}")
    g(f"v_exp_f32 v{vD}, v{vD}")
    g(f"v_exp_f32 v{vF}, v{vF}")
    g(f"v_mul_f32 v{vL}, v{vD}, v{vD+1}")
    red8(vL, "v_add_f32")
    g(f"v_and_b32 v{vL}, -2, v{vL}")
    def flag_check():
        g(f"v_readfirstlane_b32 s{sNAT}, v{vFlag}")
        g(f"v_readlane_b32 s{sMo}, v{vM}, m0")
        g(f"v_readlane_b32 s{sLo}, v{vL}, m0")
        g(f"s_cmp_eq_u32 s{sNAT}, 0")
        g("s_cbranch_scc1 L_flagwait")
        g.lab("L_flagok")
        if o.force_slow:
            g(f"s_mov_b32 s{sNAT}, 1")
        else:
            g(f"s_xor_b32 s{sNAT}, s{sNAT}, s{sXC}")
        g(f"s_cmp_eq_u32 s{sSP}, {o.cons}")
        g(f"s_cselect_b32 s{sT0}, 1, s{sNAT}")
        g(f"s_or_b32 s{sT0}, s{sT0}, s{sW}")
        g("s_cbranch_scc1 L_noml")
        g(f"s_mov_b64 exec, 0x101")
        g(f"global_store_dwordx2 v{vMLo}, {vr(vM,2)}, {sp(sWS)}")
        g(f"s_mov_b64 exec, -1")
        g.lab("L_noml")
    def pbuild(t):
        g(f"v_mul_f32 v{vS+t}, v{vF}, v{vS+t}")
        g(f"v_cvt_pk_bf16_f32 v{vS+t}, v{vS+t}, v{vS+t}")
        for r in range(4):
            g(f"v_and_b32 v{vP+4*(t&1)+r}, v{vMask+r}, v{vS+t}")
    vOa, vOb, vMLa, vMLb, vAr = vD, vD + 4, vD + 8, vD + 10, vD + 12
    vG = vD + 13
    vOc = vAcc
    sOK = 55
    def vstep(t, pre_issue=None):
        g("s_nop 0")
        wait_for(NT + t)
        g(f"v_mfma_f32_16x16x32_bf16 {vr(vAcc,4)}, {vr(vP+4*(t&1),4)}, {vr(vR+4*((NT+t) % D),4)}, {vr(vAcc,4)}")
        if pre_issue: pre_issue()
        issue()
        if NT + t == max(o.flag_at, NT): flag_check()
        if t + 1 < NT: pbuild(t + 1)
    def ml_loads():
        g(f"global_load_dwordx2 {vr(vMLa,2)}, v{vMa}, {sp(sWS)} {polf}")
        g(f"global_load_dwordx2 {vr(vMLb,2)}, v{vMb}, {sp(sWS)} {polf}")
    def o_loads():
        g(f"global_load_dwordx4 {vr(vOa,4)}, v{vPa}, {sp(sWS)} {polf}")
        g(f"global_load_dwordx4 {vr(vOb,4)}, v{vPb}, {sp(sWS)} {polf}")
    def ml_check():
        g(f"v_or3_b32 v{vT0}, v{vMLa}, v{vMLa+1}, v{vMLb}")
        g(f"v_bitop3_b32 v{vT0}, v{vT0}, v{vMLb+1}, 1 bitop3:0xa8")
        g(f"v_cmp_ne_u32 vcc, 0, v{vT0}")
    def factors():
        g(f"v_max3_f32 v{vM}, v{vMLa}, v{vMLb}, s{sMo}")
        g("s_nop 1")
        g(f"v_max_f32_dpp v{vM}, v{vM}, v{vM} row_ror:8 row_mask:0xf bank_mask:0xf")
        rowred(vM, "v_max_f32")
        g(f"v_sub_f32 v{vMLa}, v{vMLa}, v{vM}")
        g(f"v_sub_f32 v{vMLb}, v{vMLb}, v{vM}")
        g(f"v_sub_f32 v{vG}, s{sMo}, v{vM}")
        g(f"v_exp_f32 v{vMLa}, v{vMLa}")
        g(f"v_exp_f32 v{vMLb}, v{vMLb}")
        g(f"v_exp_f32 v{vG}, v{vG}")
        g(f"v_mul_f32 v{vL}, v{vMLa}, v{vMLa+1}")
        g(f"v_fmac_f32 v{vL}, v{vMLb}, v{vMLb+1}")
        g("s_nop 1")
        g(f"v_add_f32_dpp v{vL}, v{vL}, v{vL} row_ror:8 row_mask:0xf bank_mask:0xf")
        rowred(vL, "v_add_f32")
        g(f"v_fmac_f32 v{vL}, s{sLo}, v{vG}")
        g(f"v_rcp_f32 v{vL}, v{vL}")
        g("s_nop 0")
        g(f"v_mul_f32 v{vG}, v{vG}, v{vL}")
        g(f"v_mul_f32 v{vMLa}, v{vMLa}, v{vL}")
        g(f"v_mul_f32 v{vMLb}, v{vMLb}, v{vL}")
    def exchange():
        g(f"ds_write_b128 v{vLO}, {vr(vAcc,4)} offset:{LO}")
        g("s_waitcnt lgkmcnt(0)")
        g("s_barrier")
        g(f"ds_read_b128 {vr(vOc,4)}, v{vLR} offset:{LO}")
        if o.diag == 2:
            stamp(1, 2); g("s_waitcnt lgkmcnt(0)")
            for i in (2, 3, 4, 5): g(f"s_mov_b32 s{sST+2*i}, s{sST+2}")
    pbuild(0)
    stamp(5)
    TSPLIT = NT - D - 1 - o.mlearly
    assert NT + TSPLIT > max(o.flag_at, NT)
    for t in range(TSPLIT): vstep(t)
    g(f"s_cmp_eq_u32 s{sSP}, {o.cons}")
    g("s_cbranch_scc1 L_cons")
    seq_split = list(seq)
    for t in range(TSPLIT, NT): vstep(t)
    stamp(6)
    g("s_nop 7")
    exchange()
    g(f"s_cmp_lg_u32 s{sNAT}, 0")
    g("s_waitcnt lgkmcnt(0)")
    xpose_reduce(vOc)
    g(f"v_and_b32 v{vOc}, -2, v{vOc}")
    g("s_cbranch_scc1 L_foreign")
    g(f"global_store_dword v{vSl}, v{vOc}, {sp(sWS)}")
    stamp(2, 2)
    if o.diag: g("s_branch L_fin")
    else: g("s_endpgm")
    def redirect():
        g(f"v_lshrrev_b32 v{vT0}, v{vPr}, v{vAr}")
        g(f"v_bfe_u32 v{vT1}, v{vT0}, 8, 1")
        g(f"v_and_b32 v{vT0}, 1, v{vT0}")
        g(f"v_lshl_add_u32 v{vPa}, v{vT0}, {DSH}, v{vPa0}")
        g(f"v_lshl_add_u32 v{vPb}, v{vT1}, {DSH}, v{vPa0}")
        g(f"v_add_u32 v{vPb}, 8192, v{vPb}")
        g(f"s_mul_i32 s{sT0}, s{sHK}, {16 * 112}")
        g(f"s_add_u32 s{sT0}, s{sT0}, {hex(DELTA)}")
        g(f"v_mul_u32_u24 v{vT2}, 112, v{vPr}")
        g(f"v_add_u32 v{vT2}, s{sT0}, v{vT2}")
        g(f"v_add_u32 v{vT3}, {8 * 112}, v{vT2}")
        g(f"v_mad_u32_u24 v{vMa}, v{vT0}, v{vT2}, v{vMa0}")
        g(f"v_mad_u32_u24 v{vMb}, v{vT1}, v{vT3}, v{vMa0}")
        g(f"v_add_u32 v{vMb}, 128, v{vMb}")
    g.lab("L_cons")
    seq[:] = seq_split
    def pre():
        ml_loads(); seq.extend(["mla", "mlb"])
    for t in range(TSPLIT, NT):
        if t == NT - 1 - o.mlearly:
            wait_for("mlb")
            ml_check()
            g(f"s_mov_b32 s{sOK}, 0")
            g("s_cbranch_vccnz L_nofac")
            factors()
            g(f"s_mov_b32 s{sOK}, 1")
            g.lab("L_nofac")
        vstep(t, pre if t == TSPLIT else None)
    stamp(6)
    o_loads()
    g(f"s_cmp_eq_u32 s{sOK}, 0")
    g("s_nop 4")
    exchange()
    g("s_cbranch_scc1 L_mlretry")
    g.lab("L_scale")
    g("s_waitcnt lgkmcnt(0)")
    for i in range(4):
        g(f"v_mul_f32 v{vOc+i}, v{vG}, v{vOc+i}")
    stamp(3, 2)
    g("s_branch L_check")
    g.lab("L_retry")
    if o.mask:
        g(f"s_mov_b64 exec, {sp(sE0)}")
    g(f"global_load_dwordx4 {vr(vOa,4)}, v{vPa}, {sp(sWS)} {polf}")
    if o.mask:
        g(f"s_mov_b64 exec, {sp(sE1)}")
    g(f"global_load_dwordx4 {vr(vOb,4)}, v{vPb}, {sp(sWS)} {polf}")
    if o.mask:
        g(f"s_mov_b64 exec, -1")
    g(f"s_add_u32 s{sCNT}, s{sCNT}, 1")
    g.lab("L_check")
    g(f"s_cmp_ge_u32 s{sCNT}, {o.spin}")
    g("s_waitcnt vmcnt(0)")
    g("s_cbranch_scc1 L_go")
    if o.mask:
        g(f"v_or3_b32 v{vT0}, v{vOa}, v{vOa+1}, v{vOa+2}")
        g(f"v_or3_b32 v{vT1}, v{vOb}, v{vOb+1}, v{vOb+2}")
        g(f"v_bitop3_b32 v{vT0}, v{vT0}, v{vOa+3}, 1 bitop3:0xa8")
        g(f"v_bitop3_b32 v{vT1}, v{vT1}, v{vOb+3}, 1 bitop3:0xa8")
        g(f"v_cmp_ne_u32 {sp(sE0)}, 0, v{vT0}")
        g(f"v_cmp_ne_u32 {sp(sE1)}, 0, v{vT1}")
        g("s_nop 0")
        g(f"s_or_b64 vcc, {sp(sE0)}, {sp(sE1)}")
        g(f"s_or_b32 s{sE0}, s{sE0}, 1")
        g(f"s_or_b32 s{sE1}, s{sE1}, 1")
        g("s_cbranch_vccnz L_retry")
    else:
        g(f"v_or3_b32 v{vT0}, v{vOa}, v{vOa+1}, v{vOa+2}")
        g(f"v_or3_b32 v{vT1}, v{vOb}, v{vOb+1}, v{vOb+2}")
        g(f"v_or3_b32 v{vT0}, v{vT0}, v{vOa+3}, v{vOb+3}")
        g(f"v_bitop3_b32 v{vT0}, v{vT0}, v{vT1}, 1 bitop3:0xa8")
        g(f"v_cmp_ne_u32 vcc, 0, v{vT0}")
        g("s_cbranch_vccnz L_retry")
    g.lab("L_go")
    stamp(4, 2)
    for i in range(4): g(f"v_fmac_f32 v{vOc+i}, v{vMLa}, v{vOa+i}")
    for i in range(4): g(f"v_fmac_f32 v{vOc+i}, v{vMLb}, v{vOb+i}")
    g("s_nop 0")
    xpose_reduce(vOc)
    g(f"v_cvt_pk_bf16_f32 v{vOc}, v{vOc}, v{vOc}")
    stamp(5, 2)
    if o.exp == "early":
        g(f"global_store_short v{vOo}, v{vOc}, {sp(sOUT)} {o.outf.replace('_', ' ')}")
    if o.exp == "earlywb":
        g(f"global_store_short v{vOo}, v{vOc}, {sp(sOUT)} {o.outf.replace('_', ' ')}")
        g("s_waitcnt vmcnt(0)")
        g("buffer_wbl2 sc1")
        g("s_waitcnt vmcnt(0)")
    if o.exp == "wb":
        g("buffer_wbl2 sc1")
        g("s_waitcnt vmcnt(0)")
    if o.exp == "preout":
        g(f"global_load_ushort v{vT0}, v{vOo}, {sp(sOUT)} sc1")
        g("s_waitcnt vmcnt(0)")
    if o.pin:
        if o.amp:
            g("s_waitcnt lgkmcnt(0)")
            g("s_sub_u32 s70, s68, s50")
            g(f"s_mul_i32 s70, s70, {o.ampk}")
            g(f"s_add_u32 s70, s70, {o.pin}")
            g(f"s_min_u32 s70, s70, 20000")
        else:
            g(f"s_mov_b32 s70, {o.pin}")
        g.lab("L_pin")
        g("s_memrealtime s[52:53]")
        g("s_waitcnt lgkmcnt(0)")
        g("s_sub_u32 s52, s52, s50")
        g(f"s_cmp_lt_u32 s52, s70")
        g("s_cbranch_scc1 L_pin")
    if o.exp not in ("early", "earlywb"):
        g(f"global_store_short v{vOo}, v{vOc}, {sp(sOUT)} {o.outf.replace('_', ' ')}")
    g.lab("L_fin")
    if o.diag:
        stamp(7)
        g(f"s_lshl_b32 s{sT0}, s2, {lg(NW)}")
        g(f"s_add_u32 s{sT0}, s{sT0}, s{sW}")
        g(f"s_lshl_b32 s{sT0}, s{sT0}, 6")
        g(f"s_add_u32 s{sT0}, s{sT0}, 0x1000000")
        g(f"v_mov_b32 v{vT0}, s{sT0}")
        g("s_waitcnt lgkmcnt(0)")
        vX = vS
        for i in range(8):
            g(f"v_mov_b32 v{vX+i}, s{sST+2*i}")
        g(f"s_getreg_b32 s{sT1}, hwreg(HW_REG_XCC_ID)")
        g(f"v_mov_b32 v{vX+8}, s{sT1}")
        g(f"s_getreg_b32 s{sT1}, hwreg(HW_REG_HW_ID)")
        g(f"v_mov_b32 v{vX+9}, s{sT1}")
        g(f"v_mov_b32 v{vX+10}, s{sCNT}")
        g(f"v_mov_b32 v{vX+11}, s{sSP}")
        g(f"s_mov_b64 exec, 1")
        g(f"global_store_dwordx4 v{vT0}, {vr(vX,4)}, {sp(sWS)}")
        g(f"global_store_dwordx4 v{vT0}, {vr(vX+4,4)}, {sp(sWS)} offset:16")
        g(f"global_store_dwordx4 v{vT0}, {vr(vX+8,4)}, {sp(sWS)} offset:32")
    g.lab("L_end")
    g("s_endpgm")
    g.lab("L_mlretry")
    g(f"global_load_dword v{vAr}, v{vFa}, {sp(sDBG)} offset:4 sc1")
    ml_loads()
    g(f"s_add_u32 s{sCNT}, s{sCNT}, 1")
    g(f"s_cmp_ge_u32 s{sCNT}, {o.spin}")
    g("s_waitcnt vmcnt(0)")
    g("s_cbranch_scc1 L_mlok")
    ml_check()
    g("s_cbranch_vccz L_mlok")
    redirect()
    g("s_branch L_mlretry")
    g.lab("L_mlok")
    o_loads()
    factors()
    g("s_branch L_scale")
    g.lab("L_foreign")
    g(f"v_add_u32 v{vSl}, {hex(DELTA)}, v{vSl}")
    g(f"s_lshl_b32 s{sT0}, s{sHK}, 4")
    g(f"s_add_u32 s{sT0}, s{sT0}, s{sSP}")
    g(f"s_mul_i32 s{sT0}, s{sT0}, 112")
    g(f"s_add_u32 s{sT0}, s{sT0}, {hex(DELTA)}")
    g(f"v_add_u32 v{vMLo}, s{sT0}, v{vMLo}")
    g(f"global_store_dword v{vSl}, v{vOc}, {sp(sWS)} sc1")
    g(f"s_cmp_lg_u32 s{sW}, 0")
    g("s_cbranch_scc1 L_foreign1")
    g(f"s_mov_b64 exec, 0x101")
    g(f"global_store_dwordx2 v{vMLo}, {vr(vM,2)}, {sp(sWS)} sc1")
    g(f"s_mov_b64 exec, -1")
    g.lab("L_foreign1")
    g("s_waitcnt vmcnt(0)")
    g("s_barrier")
    g("s_cbranch_scc1 L_fin")
    g(f"s_lshl_b32 s{sT0}, 1, s{sSP}")
    g(f"v_mov_b32 v{vT0}, s{sT0}")
    g(f"s_mov_b64 exec, 1")
    g(f"global_atomic_or v{vFa}, v{vT0}, {sp(sDBG)} offset:4 sc1")
    g(f"s_mov_b64 exec, -1")
    g("s_branch L_fin")
    g.lab("L_flagwait")
    g(f"global_load_dword v{vFlag}, v{vFa}, {sp(sDBG)} sc1")
    g(f"s_add_u32 s{sCNT}, s{sCNT}, 1")
    g(f"s_cmp_ge_u32 s{sCNT}, {o.spin}")
    g("s_waitcnt vmcnt(0)")
    g("s_cbranch_scc1 L_flagok")
    g(f"v_readfirstlane_b32 s{sNAT}, v{vFlag}")
    g("s_nop 0")
    g(f"s_cmp_eq_u32 s{sNAT}, 0")
    g("s_cbranch_scc1 L_flagwait")
    g("s_branch L_flagok")
    g.lab("L_helper")
    if o.hprio: g(f"s_setprio {o.hprio}")
    hK, hV, hMk, hA, hB, hC, hO = vR, vR + 4, vR + 6, vR + 7, vR + 8, vR + 9, vR + 12
    def hstamp(i):
        if o.diag: g(f"s_memrealtime s[{sST+2*i}:{sST+2*i+1}]")
    g(f"s_lshl_b32 s{sT0}, s{sHK}, 4")
    g(f"s_add_u32 s{sT0}, s{sT0}, s{sSP}")
    g(f"s_lshl_b32 s{sT0}, s{sT0}, 10")
    g(f"v_lshl_add_u32 v{hA}, v{vLane}, 7, s{sT0}")
    g(f"v_lshl_add_u32 v{hB}, v{vLane}, 4, s{sT0}")
    for i in range(4): g(f"v_mov_b32 v{vP+i}, -1")
    g(f"s_cmp_eq_u32 s{sSP}, {o.cons}")
    g("s_cbranch_scc1 L_helper1")
    g("s_waitcnt lgkmcnt(0)")
    g(f"global_store_dwordx4 v{hB}, {vr(vP,4)}, {sp(sWS)}")
    if o.pre:
        g(f"s_mov_b64 exec, 0xff")
        g(f"global_load_dword v{vD+4}, v{hA}, {sp(sWS)} sc1")
    g("s_waitcnt vmcnt(0)")
    g("s_barrier")
    g("s_endpgm")
    g.lab("L_helper1")
    g(f"s_lshl_b32 s{sT1}, s{sHK}, 8")
    g(f"s_add_u32 s{sT0}, s{sT1}, {MLB}")
    g(f"v_lshl_add_u32 v{hC}, v{vLane}, 4, s{sT0}")
    g(f"v_writelane_b32 v{hA}, s{sT0}, 8")
    g(f"s_add_u32 s{sT0}, s{sT0}, 128")
    g(f"v_writelane_b32 v{hA}, s{sT0}, 9")
    g(f"v_and_b32 v{vT2}, 15, v{vLane}")
    g(f"v_add_u32 v{vT3}, s{sT1}, v{vCh}")
    g(f"v_lshl_add_u32 v{vT2}, v{vT2}, 4, s{sT1}")
    g(f"v_bfe_u32 v{hMk}, v{vLane}, 4, 1")
    g(f"v_lshl_add_u32 v{vT2}, v{hMk}, 3, v{vT2}")
    g(f"v_mov_b32 v{hMk}, 0")
    g(f"v_mov_b32 v{vF}, s{sXC}")
    g("s_waitcnt lgkmcnt(0)")
    hstamp(1)
    g(f"s_mov_b64 exec, 0xffff")
    g(f"global_store_dwordx4 v{hC}, {vr(vP,4)}, {sp(sWS)}")
    g(f"s_mov_b64 exec, -1")
    g(f"global_store_dwordx4 v{hB}, {vr(vP,4)}, {sp(sWS)}")
    g(f"global_load_dwordx4 {vr(vQ,4)}, v{vT0}, {sp(sQ)}")
    g(f"global_load_dwordx4 {vr(hK,4)}, v{vT3}, {sp(sKT)}")
    g(f"global_load_dwordx2 {vr(hV,2)}, v{vT2}, {sp(sVT)}")
    if o.touch:
        g(f"global_load_dword v{vD+7}, v{hMk}, {sp(sOUT)}")
    g(f"global_load_ushort v{hMk}, v{hMk}, {sp(sMK)}")
    if o.pre:
        g(f"s_mov_b64 exec, 0x3ff")
        g(f"global_load_dword v{vD+4}, v{hA}, {sp(sWS)} sc1")
    g(f"s_mov_b64 exec, 1")
    hstamp(2)
    g(f"s_waitcnt vmcnt(0)")
    hstamp(3)
    g(f"global_store_dword v{vFa}, v{vF}, {sp(sDBG)} sc1")
    g(f"s_mov_b64 exec, -1")
    hstamp(4); hstamp(5)
    g(f"v_mfma_f32_16x16x32_bf16 {vr(vD,4)}, {vr(hK,4)}, {vr(vQ,4)}, 0")
    g(f"v_lshlrev_b32 v{hO}, 16, v{hV}")
    g(f"v_and_b32 v{hO+1}, 0xffff0000, v{hV}")
    g(f"v_lshlrev_b32 v{hO+2}, 16, v{hV+1}")
    g(f"v_and_b32 v{hO+3}, 0xffff0000, v{hV+1}")
    g(f"global_store_dwordx4 v{hB}, {vr(hO,4)}, {sp(sWS)}")
    g(f"v_lshlrev_b32 v{hMk}, 16, v{hMk}")
    g(f"v_sub_f32 v{hMk}, 1.0, v{hMk}")
    g(f"s_mov_b32 s{sT0}, {hex(f2u(-1e9 * math.sqrt(128.0)))}")
    g(f"v_mov_b32 v{vL}, 1.0")
    dpp(vD, [vM])
    g(f"v_fma_f32 v{vM}, v{hMk}, s{sT0}, v{vM}")
    g(f"v_mul_f32 v{vM}, s{sC}, v{vM}")
    g(f"v_and_b32 v{vM}, -2, v{vM}")
    g(f"s_add_u32 s{sT1}, s{sT1}, {MLB + 16 * o.cons}")
    g(f"v_lshl_add_u32 v{vT2}, v{vT1}, 3, s{sT1}")
    g(f"s_mov_b64 exec, 0x101")
    g(f"global_store_dwordx2 v{vT2}, {vr(vM,2)}, {sp(sWS)}")
    if o.diag:
        g("s_waitcnt vmcnt(0)")
        hstamp(6); hstamp(7)
        g(f"s_lshl_b32 s{sT0}, s{sHK}, 6")
        g(f"s_add_u32 s{sT0}, s{sT0}, 0x1100000")
        g(f"v_mov_b32 v{vT0}, s{sT0}")
        g("s_waitcnt lgkmcnt(0)")
        for i in range(8): g(f"v_mov_b32 v{vS+i}, s{sST+2*i}")
        g(f"s_mov_b64 exec, 1")
        g(f"global_store_dwordx4 v{vT0}, {vr(vS,4)}, {sp(sWS)}")
        g(f"global_store_dwordx4 v{vT0}, {vr(vS+4,4)}, {sp(sWS)} offset:16")
    g("s_endpgm")
    nv = max(nv, vR + 16)
    lds = max(LO + LS * NW, o.lds)
    nvg = max(nv, o.minv)
    return HEADER + f"; @launch grid=(256,1,1) block=({64*(NW+1)},1,1) lds={lds}\n" + f""".amdgcn_target "amdgcn-amd-amdhsa--gfx950"
.text
.globl {NAME}_kernel
.p2align 8
.type {NAME}_kernel,@function
{NAME}_kernel:
""" + g.text() + f""".section .rodata,"a"
.p2align 6
.amdhsa_kernel {NAME}_kernel
  .amdhsa_next_free_vgpr {nvg}
  .amdhsa_next_free_sgpr 72
  .amdhsa_accum_offset {(nvg+3)//4*4}
  .amdhsa_group_segment_fixed_size 0
  .amdhsa_kernarg_size 72
  .amdhsa_user_sgpr_count 2
  .amdhsa_user_sgpr_kernarg_segment_ptr 1
  .amdhsa_system_sgpr_workgroup_id_x 1
  .amdhsa_float_denorm_mode_32 3
.end_amdhsa_kernel
"""

def parse(argv):
    p = argparse.ArgumentParser()
    p.add_argument("--depth", type=int, default=6)
    p.add_argument("--gk", type=int, default=2)
    p.add_argument("--flags", default="nt")
    p.add_argument("--polf", default="sc1")
    p.add_argument("--outf", default="")
    p.add_argument("--map", default="xcd")
    p.add_argument("--xs", type=int, default=1)
    p.add_argument("--cons", type=int, default=0)
    p.add_argument("--flag_at", type=int, default=22)
    p.add_argument("--mlearly", type=int, default=0)
    p.add_argument("--amp", default="")
    p.add_argument("--ampk", type=int, default=10)
    p.add_argument("--exp", default="")
    p.add_argument("--hskip", default="")
    p.add_argument("--hdelay", type=int, default=0)
    p.add_argument("--hprio", type=int, default=3)
    p.add_argument("--touch", type=int, default=1)
    p.add_argument("--pre", type=int, default=1)
    p.add_argument("--mask", type=int, default=0)
    p.add_argument("--force_slow", type=int, default=0)
    p.add_argument("--spin", type=int, default=200000)
    p.add_argument("--lds", type=int, default=0)
    p.add_argument("--minv", type=int, default=136)
    p.add_argument("--diag", type=int, default=0)
    p.add_argument("--pin", type=int, default=0)
    p.add_argument("-o", default="-")
    return p.parse_args(argv)

if __name__ == "__main__":
    o = parse(sys.argv[1:])
    s = gen(o)
    if o.o == "-": sys.stdout.write(s)
    else: open(o.o, "w").write(s)
```

```python
import struct, sys, math, argparse
from gen import NAME, HEADER, G, vr, f2u

def gen(o):
    NW = o.nw
    NT = 128 // NW
    D = o.depth
    GK = o.gk
    lf = o.flags.replace("_", " ")
    C = math.log2(math.e) / math.sqrt(128.0)
    lg = lambda x: int(math.log2(x))
    g = G()
    sQ, sK, sV, sKT, sVT, sMK, sOUT, sDBG, sWS = 4, 6, 8, 10, 12, 14, 16, 18, 20
    sHK, sSP, sW, sT0, sT1, sC, sNAT, sCNT, sX, sO = 22, 23, 24, 25, 26, 27, 28, 29, 30, 31
    sST = 32
    sMt0, sMt1, sXC, sAr, sI, sMt, sTodo = 48, 49, 54, 55, 64, 65, 66
    sRK, sRV = 56, 60
    def sp(a): return f"s[{a}:{a+1}]"
    def sq(a): return f"s[{a}:{a+3}]"
    vLane, vW, vCh, vT0, vT1, vT2, vT3 = 1, 2, 3, 4, 5, 6, 7
    vH, vSl, vM, vL, vF, vLdsR, vLdsW, vNat = 8, 9, 10, 11, 12, 13, 14, 15
    vKo, vVo, vLO, vLR = 16, 17, 18, 19
    vQ, vMask, vAcc = 20, 24, 28
    vP = 32
    vD = 40
    nD = max(16, 8 * GK)
    vS = vD + nD
    vR = (vS + NT + 3) // 4 * 4
    nv = vR + 4 * D
    MLB = 0x40000
    DSH = 19
    DELTA = 1 << DSH
    LM, LN, LO = 0, 128, 256
    LS = 1152 if NW == 8 else 1024
    def stamp(i, mode=1):
        if o.diag and (mode == o.diag or i in (0, 6, 7)): g(f"s_memrealtime s[{sST+2*i}:{sST+2*i+1}]")
    def dump_stamps(base, idx_code, vX, cnt=True):
        idx_code()
        g(f"s_lshl_b32 s{sT0}, s{sT0}, 6")
        g(f"s_add_u32 s{sT0}, s{sT0}, {hex(base)}")
        g(f"s_mov_b64 exec, -1")
        g(f"v_mov_b32 v{vT0}, s{sT0}")
        g("s_waitcnt lgkmcnt(0)")
        for i in range(8): g(f"v_mov_b32 v{vX+i}, s{sST+2*i}")
        g(f"s_getreg_b32 s{sT1}, hwreg(HW_REG_XCC_ID)")
        g(f"v_mov_b32 v{vX+8}, s{sT1}")
        g(f"s_getreg_b32 s{sT1}, hwreg(HW_REG_HW_ID)")
        g(f"v_mov_b32 v{vX+9}, s{sT1}")
        g(f"v_mov_b32 v{vX+10}, s{sCNT}")
        g(f"v_mov_b32 v{vX+11}, s{sSP}")
        g(f"s_mov_b64 exec, 1")
        for i in range(3): g(f"global_store_dwordx4 v{vT0}, {vr(vX+4*i,4)}, {sp(sWS)} offset:{16*i}")
    DPPM = "row_mask:0xf bank_mask:0xf"
    def dpp(dbase, dsts):
        n = len(dsts)
        for r in range(4):
            for i, d_ in enumerate(dsts):
                if r == 0:
                    g(f"v_mov_b32_dpp v{d_}, v{dbase+4*i} quad_perm:[0,0,0,0] {DPPM}")
                else:
                    g(f"v_add_f32_dpp v{d_}, v{dbase+4*i+r}, v{d_} quad_perm:[{r},{r},{r},{r}] {DPPM}")
            if n < 3 and r < 3:
                g(f"s_nop {2 - n}")
    def rowred(v, op, t=vT0):
        g(f"v_mov_b32 v{t}, v{v}")
        g("s_nop 1")
        g(f"v_permlane16_swap_b32 v{v}, v{t}")
        g(f"{op} v{v}, v{v}, v{t}")
        g(f"v_mov_b32 v{t}, v{v}")
        g("s_nop 1")
        g(f"v_permlane32_swap_b32 v{v}, v{t}")
        g(f"{op} v{v}, v{v}, v{t}")
    def dppred(v, op, ctrls):
        for c in ctrls:
            g("s_nop 1")
            g(f"{op}_dpp v{v}, v{v}, v{v} {c} {DPPM}")
    WRED = (["row_half_mirror"] if NW == 8 else []) + ["quad_perm:[1,0,3,2]", "quad_perm:[2,3,0,1]"]
    def xpose_reduce(a, ctrls, fill=("s_nop 1",)):
        g(f"v_permlane32_swap_b32 v{a}, v{a+1}")
        g(f"v_permlane32_swap_b32 v{a+2}, v{a+3}")
        g(f"v_add_f32 v{a}, v{a}, v{a+1}")
        g(f"v_add_f32 v{a+2}, v{a+2}, v{a+3}")
        for x in fill: g(x)
        g(f"v_permlane16_swap_b32 v{a}, v{a+2}")
        g(f"v_add_f32 v{a}, v{a}, v{a+2}")
        dppred(a, "v_add_f32", ctrls)

    g(f"s_load_dwordx16 s[4:19], s[0:1], 0")
    if not o.latews: g(f"s_load_dwordx2 s[20:21], s[0:1], 64")
    g("s_cmp_ge_u32 s2, 256")
    g("s_cbranch_scc1 L_end")
    if o.pin: g("s_memrealtime s[50:51]")
    stamp(0)
    if o.map == "xcd":
        g(f"s_and_b32 s{sHK}, s2, 15")
        g(f"s_lshr_b32 s{sSP}, s2, 4")
    else:
        g(f"s_and_b32 s{sSP}, s2, 15")
        g(f"s_lshr_b32 s{sHK}, s2, 4")
    g(f"v_and_b32 v{vLane}, 63, v0")
    g(f"v_lshrrev_b32 v{vW}, 6, v0")
    toks = o.lay.split(",") if o.lay else ([f"s{i}" for i in (3, 2, 1, 0)] + [f"t{i}" for i in reversed(range(lg(NT)))] + [f"w{i}" for i in reversed(range(lg(NW)))])
    pos = {tk: 20 - i for i, tk in enumerate(toks)}
    assert len(toks) == 11 and all(pos[f"w{i}"] == 10 + i for i in range(lg(NW)))
    g(f"s_lshl_b32 s{sT0}, s{sHK}, 21")
    i = 0
    first = True
    while i < 4:
        j = i
        while j + 1 < 4 and pos[f"s{j+1}"] == pos[f"s{j}"] + 1: j += 1
        g(f"s_bfe_u32 s{sT1}, s{sSP}, {hex(((j - i + 1) << 16) | i)}")
        if first: g(f"v_readfirstlane_b32 s{sW}, v{vW}"); first = False
        g(f"s_lshl_b32 s{sT1}, s{sT1}, {pos[f's{i}']}")
        g(f"s_or_b32 s{sT0}, s{sT0}, s{sT1}")
        i = j + 1
    def toff(t):
        return sum(1 << pos[f"t{i}"] for i in range(lg(NT)) if t >> i & 1)
    g(f"v_lshrrev_b32 v{vT0}, 4, v{vLane}")
    g(f"v_lshlrev_b32 v{vT0}, 6, v{vT0}")
    g(f"v_and_b32 v{vT1}, 3, v{vLane}")
    g(f"v_lshl_add_u32 v{vCh}, v{vT1}, 4, v{vT0}")
    g(f"v_bfe_u32 v{vT2}, v{vLane}, 2, 2")
    g(f"v_lshl_add_u32 v{vT2}, v{vT2}, 8, v{vCh}")
    g(f"v_lshl_add_u32 v{vT3}, v{vW}, 10, s{sT0}")
    g(f"v_add_u32 v{vKo}, v{vT2}, v{vT3}")
    g(f"v_lshl_add_u32 v{vVo}, v{vLane}, 4, v{vT3}")
    xm = [int(x, 16) for x in o.xm.split("-")] if o.xm else ([0] * (lg(NT) - 4) + [0x10, 0x20, 0x40, 0x80] if o.xs else [])
    g(f"s_mov_b32 s{sX}, 0")
    for i, m in enumerate(xm):
        if not m: continue
        if bin(m).count("1") == 1:
            g(f"s_bfe_u32 s{sT1}, s2, {hex((1 << 16) | (m.bit_length() - 1))}")
        else:
            g(f"s_and_b32 s{sT1}, s2, {hex(m)}")
            g(f"s_bcnt1_i32_b32 s{sT1}, s{sT1}")
            g(f"s_and_b32 s{sT1}, s{sT1}, 1")
        g(f"s_lshl_b32 s{sT1}, s{sT1}, {pos[f't{i}']}")
        g(f"s_or_b32 s{sX}, s{sX}, s{sT1}")
    g(f"s_mov_b32 s{sRK+2}, 0x2000000")
    g(f"s_mov_b32 s{sRK+3}, 0x20000")
    g(f"s_mov_b32 s{sRV+2}, 0x2000000")
    g(f"s_mov_b32 s{sRV+3}, 0x20000")
    g(f"v_bfe_u32 v{vH}, v{vLane}, 3, 1")
    g(f"v_lshl_add_u32 v{vT0}, v{vH}, 8, v{vCh}")
    g(f"s_lshl_b32 s{sT1}, s{sHK}, 9")
    g(f"v_add_u32 v{vT0}, s{sT1}, v{vT0}")
    g(f"s_mov_b32 s{sC}, {hex(f2u(C))}")
    g(f"v_and_b32 v{vT2}, {NW - 1}, v{vLane}")
    g(f"v_lshlrev_b32 v{vLdsW}, 6, v{vH}")
    g(f"v_lshl_add_u32 v{vLdsR}, v{vT2}, 3, v{vLdsW}")
    if o.diag: g(f"s_mov_b32 s{sCNT}, 0")
    g(f"s_cmp_eq_u32 s{sW}, {NW}")
    g("s_cbranch_scc1 L_helper")
    g("s_waitcnt lgkmcnt(0)")
    g(f"s_mov_b32 s{sRK}, s{sK}")
    g(f"s_and_b32 s{sRK+1}, s{sK+1}, 0xffff")
    stamp(1)
    seq = []
    def issue():
        n = sum(1 for x in seq if isinstance(x, int))
        if n >= 2 * NT: return
        t = n % NT
        srd, vo = (sRK, vKo) if n < NT else (sRV, vVo)
        if t == 0:
            so = f"s{sX}"
        else:
            g(f"s_xor_b32 s{sO}, s{sX}, {hex(toff(t))}")
            so = f"s{sO}"
        g(f"buffer_load_dwordx4 {vr(vR + 4 * (n % D), 4)}, v{vo}, {sq(srd)}, {so} offen {lf}")
        seq.append(n)
    def wait_for(*items):
        i = max(seq.index(x) for x in items)
        g(f"s_waitcnt vmcnt({len(seq) - 1 - i})")
    issue()
    g(f"global_load_dwordx4 {vr(vQ,4)}, v{vT0}, {sp(sQ)}"); seq.append("q")
    for _ in range(D - 1): issue()
    if o.latews: g(f"s_load_dwordx2 s[20:21], s[0:1], 64")
    g(f"s_mov_b32 s{sRV}, s{sV}")
    g(f"s_and_b32 s{sRV+1}, s{sV+1}, 0xffff")
    stamp(2)
    USH = 3 if NW == 8 else 4
    g(f"v_lshl_add_u32 v{vLdsW}, v{vW}, 3, v{vLdsW}")
    g(f"s_lshl_b32 s{sT0}, s{sHK}, 4")
    g(f"s_add_u32 s{sT0}, s{sT0}, s{sSP}")
    g(f"s_lshl_b32 s{sT0}, s{sT0}, 10")
    g(f"s_lshl_b32 s{sT1}, s{sW}, {USH + 4}")
    g(f"v_and_b32 v{vT1}, {(1 << USH) - 1}, v{vLane}")
    g(f"v_lshl_add_u32 v{vT1}, v{vT1}, 4, s{sT1}")
    g(f"v_bfe_u32 v{vT2}, v{vLane}, 4, 1")
    g(f"v_lshrrev_b32 v{vT3}, 5, v{vLane}")
    g(f"v_lshl_add_u32 v{vT2}, v{vT2}, 1, v{vT3}")
    g(f"v_lshl_add_u32 v{vT2}, v{vT2}, 2, v{vT1}")
    g(f"v_add_u32 v{vSl}, s{sT0}, v{vT2}")
    g(f"v_lshrrev_b32 v{vT2}, {USH}, v{vLane}")
    g(f"v_mul_u32_u24 v{vLR}, {LS}, v{vT2}")
    g(f"v_add_u32 v{vLR}, v{vLR}, v{vT1}")
    g(f"v_mul_u32_u24 v{vLO}, {LS}, v{vW}")
    g(f"v_lshl_add_u32 v{vLO}, v{vLane}, 4, v{vLO}")
    g(f"v_and_b32 v{vT0}, 1, v{vLane}")
    g(f"v_lshlrev_b32 v{vT0}, 4, v{vT0}")
    g(f"s_mov_b32 s{sT0}, 0xffff")
    g(f"v_lshlrev_b32 v{vT0}, v{vT0}, s{sT0}")
    g(f"v_bfe_u32 v{vT1}, v{vLane}, 1, 2")
    for r in range(4):
        g(f"v_cmp_eq_u32 vcc, {r}, v{vT1}")
        g(f"v_mov_b32 v{vAcc+r}, 0")
        g("s_nop 0")
        g(f"v_cndmask_b32 v{vMask+r}, 0, v{vT0}, vcc")
    g(f"v_mov_b32 v{vNat}, 0")
    NG = NT // GK
    for grp in range(NG):
        ts = list(range(GK * grp, GK * grp + GK))
        if grp == 0: wait_for(ts[-1], "q")
        else: wait_for(ts[-1])
        if grp == 0: stamp(3)
        db = vD + 4 * GK * (grp & 1)
        for i, t in enumerate(ts):
            g(f"v_mfma_f32_16x16x32_bf16 {vr(db+4*i,4)}, {vr(vR+4*(t % D),4)}, {vr(vQ,4)}, 0")
        for _ in ts: issue()
        if grp == 0 and GK == 1: g("s_nop 2")
        if grp > 0:
            dpp(vD + 4 * GK * ((grp - 1) & 1), [vS + t - GK for t in ts])
    pad = 8 - (GK + 4 * GK)
    if pad > 0: g(f"s_nop {pad}")
    dpp(vD + 4 * GK * ((NG - 1) & 1), [vS + t for t in range(NT - GK, NT)])
    stamp(4)
    g(f"v_max3_f32 v{vM}, v{vS}, v{vS+1}, v{vS+2}")
    t = 3
    while t < NT:
        if t + 1 < NT:
            g(f"v_max3_f32 v{vM}, v{vM}, v{vS+t}, v{vS+t+1}"); t += 2
        else:
            g(f"v_max_f32 v{vM}, v{vM}, v{vS+t}"); t += 1
    rowred(vM, "v_max_f32")
    g(f"v_mul_f32 v{vM}, s{sC}, v{vM}")
    g(f"v_and_b32 v{vM}, -2, v{vM}")
    for t in range(NT): g(f"v_fma_f32 v{vS+t}, v{vS+t}, s{sC}, -v{vM}")
    for t in range(NT): g(f"v_exp_f32 v{vS+t}, v{vS+t}")
    g(f"v_add_f32 v{vL}, v{vS}, v{vS+1}")
    g(f"v_add_f32 v{vT1}, v{vS+2}, v{vS+3}")
    for t in range(4, NT, 2):
        g(f"v_add_f32 v{vL}, v{vL}, v{vS+t}")
        g(f"v_add_f32 v{vT1}, v{vT1}, v{vS+t+1}")
    g(f"v_add_f32 v{vL}, v{vL}, v{vT1}")
    rowred(vL, "v_add_f32")
    assert vL == vM + 1 and vM % 2 == 0
    g(f"ds_write_b64 v{vLdsW}, {vr(vM,2)} offset:{LM}")
    g("s_waitcnt lgkmcnt(0)")
    g("s_barrier")
    g(f"ds_read_b32 v{vF}, v{vLdsR} offset:{LM}")
    g("s_waitcnt lgkmcnt(0)")
    g(f"v_max_f32_dpp v{vF}, v{vF}, v{vF} {WRED[0]} {DPPM}")
    dppred(vF, "v_max_f32", WRED[1:])
    g(f"v_sub_f32 v{vF}, v{vM}, v{vF}")
    g(f"v_exp_f32 v{vF}, v{vF}")
    g("s_nop 0")
    def pbuild(t):
        g(f"v_mul_f32 v{vS+t}, v{vF}, v{vS+t}")
        g(f"v_cvt_pk_bf16_f32 v{vS+t}, v{vS+t}, v{vS+t}")
        for r in range(4):
            g(f"v_and_b32 v{vP+4*(t&1)+r}, v{vMask+r}, v{vS+t}")
    pbuild(0)
    stamp(5)
    for t in range(NT):
        g("s_nop 0")
        wait_for(NT + t)
        g(f"v_mfma_f32_16x16x32_bf16 {vr(vAcc,4)}, {vr(vP+4*(t&1),4)}, {vr(vR+4*((NT+t) % D),4)}, {vr(vAcc,4)}")
        issue()
        if t + 1 < NT: pbuild(t + 1)
    stamp(6)
    if o.sprio:
        g(f"s_setprio {o.sprio}")
        g("s_nop 6")
    else:
        g("s_nop 7")
    g(f"ds_write_b128 v{vLO}, {vr(vAcc,4)} offset:{LO}")
    g("s_waitcnt lgkmcnt(0)")
    g("s_barrier")
    g(f"ds_read_b128 {vr(vAcc,4)}, v{vLR} offset:{LO}")
    g(f"ds_read_b32 v{vNat}, v{vNat} offset:{LN}")
    g("s_waitcnt lgkmcnt(1)")
    xpose_reduce(vAcc, ["row_ror:8"] if NW == 8 else [], fill=["s_waitcnt lgkmcnt(0)", f"v_cmp_ne_u32 vcc, 0, v{vNat}"])
    g(f"v_and_b32 v{vAcc}, -2, v{vAcc}")
    g("s_cbranch_vccnz L_foreign")
    g(f"global_store_dword v{vSl}, v{vAcc}, {sp(sWS)}")
    g.lab("L_fin")
    if o.diag:
        stamp(7)
        def idx():
            g(f"s_lshl_b32 s{sT0}, s2, {lg(NW)}")
            g(f"s_add_u32 s{sT0}, s{sT0}, s{sW}")
        dump_stamps(0x1000000, idx, vS)
    g.lab("L_end")
    g("s_endpgm")
    g.lab("L_foreign")
    g(f"v_add_u32 v{vSl}, {hex(DELTA)}, v{vSl}")
    g(f"global_store_dword v{vSl}, v{vAcc}, {sp(sWS)} sc1")
    g("s_waitcnt vmcnt(0)")
    g("s_barrier")
    g("s_branch L_fin")

    hK, hV, hO, hT, hZ = 44, 48, 52, 56, 60
    hML, hMk, hA, hB, hC, hFa, hPr, hP, hMa, hOut, hAr, hMLo, hG = 50, 64, 65, 66, 67, 68, 69, 70, 71, 72, 73, 74, 75
    hOnes = 32
    def hstamp(i):
        if o.diag: g(f"s_memrealtime s[{sST+2*i}:{sST+2*i+1}]")
    def setup():
        g(f"s_lshl_b32 s{sT0}, s{sHK}, 14")
        g(f"s_lshl_b32 s{sT1}, s{sI}, 6")
        g(f"s_add_u32 s{sT0}, s{sT0}, s{sT1}")
        g(f"v_and_b32 v{vT1}, 3, v{vLane}")
        g(f"v_lshl_add_u32 v{hP}, v{hPr}, 10, s{sT0}")
        g(f"v_lshl_add_u32 v{hP}, v{vT1}, 4, v{hP}")
        g(f"s_lshl_b32 s{sT0}, s{sHK}, 8")
        g(f"s_and_b32 s{sT1}, s{sI}, 8")
        g(f"s_add_u32 s{sT0}, s{sT0}, s{sT1}")
        g(f"s_add_u32 s{sT0}, s{sT0}, {MLB}")
        g(f"v_lshl_add_u32 v{hMa}, v{hPr}, 4, s{sT0}")
        g(f"s_and_b32 s{sT0}, s{sI}, 3")
        g(f"s_lshl_b32 s{sT0}, s{sT0}, 5")
        g(f"s_and_b32 s{sO}, s{sI}, 4")
        g(f"s_add_u32 s{sT0}, s{sT0}, s{sO}")
        g(f"s_lshl_b32 s{sO}, s{sHK}, 7")
        g(f"s_add_u32 s{sT0}, s{sT0}, s{sO}")
        g(f"v_lshl_add_u32 v{vT1}, v{vT1}, 3, s{sT0}")
        g(f"v_lshlrev_b32 v{hG}, 1, v{vT1}")
        g(f"s_lshl_b32 s{sT1}, s{sT1}, 4")
        g(f"s_add_u32 s{sO}, s{sO}, s{sT1}")
        g(f"v_bfe_u32 v{vT2}, v{vLane}, 4, 1")
        g(f"v_lshrrev_b32 v{vT3}, 5, v{vLane}")
        g(f"v_lshl_add_u32 v{vT2}, v{vT2}, 1, v{vT3}")
        g(f"v_add3_u32 v{vT1}, v{vT1}, v{vT2}, s{sO}")
        g(f"v_lshlrev_b32 v{hOut}, 1, v{vT1}")
    def redirect():
        g(f"v_lshrrev_b32 v{vT0}, v{hPr}, s{sT0}")
        g(f"v_and_b32 v{vT0}, 1, v{vT0}")
        g(f"v_lshl_add_u32 v{hP}, v{vT0}, {DSH}, v{hP}")
        g(f"s_mul_i32 s{sT1}, s{sHK}, {16 * 112}")
        g(f"s_add_u32 s{sT1}, s{sT1}, {hex(DELTA)}")
        g(f"v_mul_u32_u24 v{vT2}, 112, v{hPr}")
        g(f"v_add_u32 v{vT2}, s{sT1}, v{vT2}")
        g(f"v_mad_u32_u24 v{hMa}, v{vT0}, v{vT2}, v{hMa}")
    g.lab("L_helper")
    if o.latews: g(f"s_load_dwordx2 s[20:21], s[0:1], 64")
    if o.hprio: g(f"s_setprio {o.hprio}")
    g(f"s_getreg_b32 s{sXC}, hwreg(HW_REG_XCC_ID, 0, 4)")
    g(f"s_add_u32 s{sXC}, s{sXC}, 1")
    g(f"s_lshl_b32 s{sT0}, s{sHK}, 4")
    g(f"v_mov_b32 v{hFa}, s{sT0}")
    g(f"s_add_u32 s{sT0}, s{sT0}, s{sSP}")
    g(f"s_lshl_b32 s{sT1}, s{sT0}, 4")
    g(f"s_add_u32 s{sT1}, s{sT1}, {MLB}")
    g(f"v_lshl_add_u32 v{hMLo}, v{vH}, 3, s{sT1}")
    g(f"s_lshl_b32 s{sT0}, s{sT0}, 10")
    g(f"v_lshl_add_u32 v{hA}, v{vLane}, 7, s{sT0}")
    g(f"v_lshl_add_u32 v{hB}, v{vLane}, 4, s{sT0}")
    g(f"v_writelane_b32 v{hA}, s{sT1}, 8")
    g(f"s_lshl_b32 s{sT1}, s{sHK}, 8")
    g(f"v_add_u32 v{hK}, s{sT1}, v{vCh}")
    g(f"s_add_u32 s{sT1}, s{sT1}, {MLB}")
    g(f"v_lshl_add_u32 v{hC}, v{vLane}, 4, s{sT1}")
    for i in range(4): g(f"v_mov_b32 v{hOnes+i}, -1")
    g(f"v_lshrrev_b32 v{hPr}, 2, v{vLane}")
    g(f"v_mov_b32 v{hMk}, 0")
    g(f"s_mov_b32 s{sI}, s{sSP}")
    g(f"s_mov_b32 s{sAr}, 0")
    setup()
    g(f"s_cmp_lg_u32 s{sSP}, {o.cons}")
    g("s_waitcnt lgkmcnt(0)")
    hstamp(1)
    g("s_cbranch_scc1 L_h0")
    g(f"s_mov_b64 exec, 0xffff")
    g(f"global_store_dwordx4 v{hC}, {vr(hOnes,4)}, {sp(sWS)}")
    g(f"s_mov_b64 exec, -1")
    g.lab("L_h0")
    g(f"global_store_dwordx4 v{hB}, {vr(hOnes,4)}, {sp(sWS)}")
    g(f"global_load_dwordx4 {vr(vQ,4)}, v{vT0}, {sp(sQ)}")
    g(f"global_load_dwordx4 {vr(hK,4)}, v{hK}, {sp(sKT)}")
    g(f"global_load_dwordx2 {vr(hV,2)}, v{hG}, {sp(sVT)}")
    g(f"global_load_ushort v{hMk}, v{hMk}, {sp(sMK)}")
    g(f"s_mov_b64 exec, 0x1ff")
    g(f"global_load_dword v{hZ}, v{hA}, {sp(sWS)} sc1")
    if o.touch:
        g(f"s_mov_b64 exec, 1")
        g(f"global_load_ushort v{hZ+1}, v{hOut}, {sp(sOUT)}")
    g(f"s_mov_b64 exec, -1")
    g(f"v_mov_b32 v{vF}, s{sXC}")
    g("s_waitcnt vmcnt(0)")
    hstamp(2)
    g(f"v_mfma_f32_16x16x32_bf16 {vr(vD,4)}, {vr(hK,4)}, {vr(vQ,4)}, 0")
    g("s_cbranch_scc1 L_h1")
    g(f"s_mov_b64 exec, 1")
    g(f"global_store_dword v{hFa}, v{vF}, {sp(sDBG)} sc1")
    g(f"s_mov_b64 exec, -1")
    g.lab("L_h1")
    g("s_nop 3")
    g(f"v_lshlrev_b32 v{hMk}, 16, v{hMk}")
    g(f"v_sub_f32 v{hMk}, 1.0, v{hMk}")
    g(f"s_mov_b32 s{sT0}, {hex(f2u(-1e9 * math.sqrt(128.0)))}")
    dpp(vD, [vM])
    g(f"v_fma_f32 v{vM}, v{hMk}, s{sT0}, v{vM}")
    g(f"v_mul_f32 v{vM}, s{sC}, v{vM}")
    g("s_nop 0")
    g(f"v_readlane_b32 s{sMt0}, v{vM}, 0")
    g(f"v_readlane_b32 s{sMt1}, v{vM}, 8")
    g("s_barrier")
    g(f"global_load_dword v{vF}, v{hFa}, {sp(sDBG)} sc1")
    g(f"ds_read_b64 {vr(vD,2)}, v{vLdsR} offset:{LM}")
    g(f"s_mov_b32 s{sCNT}, {o.fspin}")
    g("s_waitcnt lgkmcnt(0)")
    g(f"v_max_f32_dpp v{vM}, v{vD}, v{vD} {WRED[0]} {DPPM}")
    dppred(vM, "v_max_f32", WRED[1:])
    g(f"v_sub_f32 v{vD}, v{vD}, v{vM}")
    g(f"v_exp_f32 v{vD}, v{vD}")
    g("s_nop 0")
    g(f"v_mul_f32 v{vL}, v{vD}, v{vD+1}")
    dppred(vL, "v_add_f32", WRED)
    g(f"v_and_b32 v{vL}, -2, v{vL}")
    g.lab("L_flag")
    g("s_waitcnt vmcnt(0)")
    g(f"v_readfirstlane_b32 s{sNAT}, v{vF}")
    g(f"s_sub_u32 s{sCNT}, s{sCNT}, 1")
    g("s_cbranch_scc1 L_flag1")
    g(f"s_cmp_lg_u32 s{sNAT}, 0")
    g("s_cbranch_scc1 L_flag1")
    g(f"global_load_dword v{vF}, v{hFa}, {sp(sDBG)} sc1")
    g("s_branch L_flag")
    g.lab("L_flag1")
    if o.force_slow == 1: g(f"s_mov_b32 s{sNAT}, 0")
    elif o.force_slow: g(f"s_bitcmp1_b32 {o.force_slow}, s{sSP}"); g(f"s_cselect_b32 s{sNAT}, 0, s{sNAT}")
    g(f"s_xor_b32 s{sNAT}, s{sNAT}, s{sXC}")
    g(f"s_cmp_eq_u32 s{sSP}, {o.cons}")
    g(f"s_cselect_b32 s{sNAT}, 0, s{sNAT}")
    hstamp(3)
    g(f"v_mov_b32 v{vT0}, 0")
    g(f"v_mov_b32 v{vT1}, s{sNAT}")
    g(f"ds_write_b32 v{vT0}, v{vT1} offset:{LN}")
    g(f"s_mov_b32 s{sCNT}, {o.spin}")
    g(f"s_cmp_lg_u32 s{sNAT}, 0")
    g("s_waitcnt lgkmcnt(0)")
    g("s_cbranch_scc1 L_hforeign")
    g(f"s_mov_b64 exec, 0x101")
    g(f"global_store_dwordx2 v{hMLo}, {vr(vM,2)}, {sp(sWS)}")
    g(f"s_mov_b64 exec, -1")
    g(f"s_mov_b32 s{sTodo}, -1")
    g.lab("L_slice")
    g(f"s_bitcmp1_b32 s{sI}, 3")
    g(f"s_cselect_b32 s{sMt}, s{sMt1}, s{sMt0}")
    g(f"v_lshlrev_b32 v{hT}, 16, v{hV}")
    g(f"v_and_b32 v{hT+1}, 0xffff0000, v{hV}")
    g(f"v_lshlrev_b32 v{hT+2}, 16, v{hV+1}")
    g(f"v_and_b32 v{hT+3}, 0xffff0000, v{hV+1}")
    for i in range(4): g(f"v_mov_b32 v{hO+i}, -1")
    def ml_loads():
        g(f"global_load_dwordx2 {vr(hML,2)}, v{hMa}, {sp(sWS)} sc1")
        g(f"global_load_dword v{hAr}, v{hFa}, {sp(sDBG)} offset:4 sc1")
    if o.mlpre:
        g(f"s_cmp_lg_u32 s{sTodo}, -1")
        g("s_waitcnt vmcnt(0)")
        for _ in range(o.mlpre - 1):
            g(f"global_load_dwordx2 {vr(hML,2)}, v{hMa}, {sp(sWS)} sc1")
            g("s_waitcnt vmcnt(0)")
        ml_loads()
        if o.hprio2 >= 0: g(f"s_setprio {o.hprio2}")
        g("s_cbranch_scc1 L_mlchk")
        g("s_barrier")
        hstamp(4)
        g.lab("L_mlchk")
    else:
        g(f"s_cmp_lg_u32 s{sTodo}, -1")
        if o.hprio2 >= 0: g(f"s_setprio {o.hprio2}")
        g("s_cbranch_scc1 L_ml")
        g("s_barrier")
        hstamp(4)
        g.lab("L_ml")
        ml_loads()
    g(f"s_sub_u32 s{sCNT}, s{sCNT}, 1")
    g("s_waitcnt vmcnt(1)")
    g(f"v_bitop3_b32 v{vT0}, v{hML}, v{hML+1}, 1 bitop3:0xa8")
    g("s_cbranch_scc1 L_hend")
    g(f"v_cmp_ne_u32 vcc, 0, v{vT0}")
    g("s_cbranch_vccnz L_mlmiss")
    def poll(): g(f"global_load_dwordx4 {vr(hO,4)}, v{hP}, {sp(sWS)} sc1")
    def epoll(k):
        if o.epolls >> k & 1: poll()
        else: g("s_nop 0")
    epoll(0)
    g(f"v_max_f32 v{vM}, s{sMt}, v{hML}")
    dppred(vM, "v_max_f32", ["row_ror:4", "row_ror:8"])
    rowred(vM, "v_max_f32")
    epoll(1)
    g(f"v_sub_f32 v{hML}, v{hML}, v{vM}")
    g(f"v_sub_f32 v{hG}, s{sMt}, v{vM}")
    g(f"v_exp_f32 v{hML}, v{hML}")
    g(f"v_exp_f32 v{hG}, v{hG}")
    g(f"v_mul_f32 v{vL}, v{hML}, v{hML+1}")
    dppred(vL, "v_add_f32", ["row_ror:4", "row_ror:8"])
    epoll(2)
    rowred(vL, "v_add_f32")
    g(f"v_add_f32 v{vL}, v{vL}, v{hG}")
    g(f"v_rcp_f32 v{vL}, v{vL}")
    g(f"v_mul_f32 v{hG}, 0x3d800000, v{hG}")
    epoll(3)
    g(f"v_mul_f32 v{hML}, v{hML}, v{vL}")
    g(f"v_mul_f32 v{hG}, v{hG}, v{vL}")
    for i in range(4): g(f"v_mul_f32 v{hT+i}, v{hG}, v{hT+i}")
    hstamp(5)
    g.lab("L_poll")
    poll()
    g(f"s_sub_u32 s{sCNT}, s{sCNT}, 1")
    g("s_cbranch_scc1 L_hend")
    g(f"s_waitcnt vmcnt({o.pdepth})")
    g(f"v_or3_b32 v{vT0}, v{hO}, v{hO+1}, v{hO+2}")
    g(f"v_bitop3_b32 v{vT0}, v{vT0}, v{hO+3}, 1 bitop3:0xa8")
    g(f"v_cmp_ne_u32 vcc, 0, v{vT0}")
    if o.mask:
        g("s_and_b64 exec, exec, vcc")
        g("s_cbranch_scc1 L_poll")
        g("s_mov_b64 exec, -1")
    else:
        g("s_cbranch_vccnz L_poll")
    hstamp(6)
    for i in range(4): g(f"v_fma_f32 v{hZ+i}, v{hML}, v{hO+i}, v{hT+i}")
    g("s_nop 0")
    xpose_reduce(hZ, ["row_ror:8", "row_ror:4"])
    g(f"v_cvt_pk_bf16_f32 v{hZ}, v{hZ}, v{hZ}")
    if o.pin:
        g.lab("L_pin")
        g("s_memrealtime s[52:53]")
        g("s_waitcnt lgkmcnt(0)")
        g("s_sub_u32 s52, s52, s50")
        g(f"s_cmp_lt_u32 s52, {o.pin}")
        g("s_cbranch_scc1 L_pin")
    g(f"global_store_short v{hOut}, v{hZ}, {sp(sOUT)}")
    g(f"s_and_b32 s{sTodo}, s{sTodo}, s{sAr}")
    g("s_cbranch_scc0 L_hend")
    g(f"s_cmp_lg_u32 s{sSP}, {o.cons}")
    g("s_cbranch_scc1 L_hend")
    g(f"s_ff1_i32_b32 s{sI}, s{sTodo}")
    g(f"s_bitset0_b32 s{sTodo}, s{sI}")
    g("s_waitcnt vmcnt(0)")
    setup()
    g(f"global_load_dwordx2 {vr(hV,2)}, v{hG}, {sp(sVT)}")
    g(f"s_mov_b32 s{sT0}, s{sAr}")
    redirect()
    g("s_waitcnt vmcnt(0)")
    g("s_branch L_slice")
    g.lab("L_mlmiss")
    g("s_waitcnt vmcnt(0)")
    g(f"v_readfirstlane_b32 s{sT1}, v{hAr}")
    g("s_nop 0")
    g(f"s_andn2_b32 s{sT0}, s{sT1}, s{sAr}")
    g(f"s_or_b32 s{sAr}, s{sAr}, s{sT1}")
    redirect()
    if o.mlpre:
        ml_loads()
        g("s_branch L_mlchk")
    else:
        g("s_branch L_ml")
    g.lab("L_hforeign")
    g(f"s_lshl_b32 s{sT0}, s{sHK}, 4")
    g(f"s_add_u32 s{sT0}, s{sT0}, s{sSP}")
    g(f"s_mul_i32 s{sT0}, s{sT0}, 112")
    g(f"s_add_u32 s{sT0}, s{sT0}, {hex(DELTA)}")
    g(f"v_add_u32 v{hMLo}, s{sT0}, v{hMLo}")
    g(f"s_lshl_b32 s{sT0}, 1, s{sSP}")
    g(f"v_mov_b32 v{vT0}, s{sT0}")
    g(f"s_mov_b64 exec, 0x101")
    g(f"global_store_dwordx2 v{hMLo}, {vr(vM,2)}, {sp(sWS)} sc1")
    g(f"s_mov_b64 exec, 1")
    g("s_barrier")
    g("s_waitcnt vmcnt(0)")
    g("s_barrier")
    g(f"global_atomic_or v{hFa}, v{vT0}, {sp(sDBG)} offset:4 sc1")
    g.lab("L_hend")
    if o.diag:
        hstamp(7)
        g(f"s_sub_u32 s{sCNT}, {o.spin}, s{sCNT}")
        dump_stamps(0x1100000, lambda: g(f"s_mov_b32 s{sT0}, s2"), 76)
    g("s_endpgm")
    nv = max(nv, 88)
    lds = max(LO + LS * NW, o.lds)
    nvg = max(nv, o.minv if o.minv >= 0 else (136 if NW == 8 else 176))
    return HEADER + f"; @launch grid=(256,1,1) block=({64*(NW+1)},1,1) lds={lds}\n" + f""".amdgcn_target "amdgcn-amd-amdhsa--gfx950"
.text
.globl {NAME}_kernel
.p2align 8
.type {NAME}_kernel,@function
{NAME}_kernel:
""" + g.text() + f""".section .rodata,"a"
.p2align 6
.amdhsa_kernel {NAME}_kernel
  .amdhsa_next_free_vgpr {nvg}
  .amdhsa_next_free_sgpr 72
  .amdhsa_accum_offset {(nvg+3)//4*4}
  .amdhsa_group_segment_fixed_size 0
  .amdhsa_kernarg_size 72
  .amdhsa_user_sgpr_count 2
  .amdhsa_user_sgpr_kernarg_segment_ptr 1
  .amdhsa_system_sgpr_workgroup_id_x 1
  .amdhsa_float_denorm_mode_32 3
.end_amdhsa_kernel
"""

def parse(argv):
    p = argparse.ArgumentParser()
    p.add_argument("--nw", type=int, default=8)
    p.add_argument("--depth", type=int, default=6)
    p.add_argument("--gk", type=int, default=2)
    p.add_argument("--flags", default="nt")
    p.add_argument("--map", default="xcd")
    p.add_argument("--xs", type=int, default=1)
    p.add_argument("--cons", type=int, default=0)
    p.add_argument("--hprio", type=int, default=3)
    p.add_argument("--touch", type=int, default=0)
    p.add_argument("--mask", type=int, default=1)
    p.add_argument("--pdepth", type=int, default=5)
    p.add_argument("--latews", type=int, default=0)
    p.add_argument("--lay", default="")
    p.add_argument("--xm", default="")
    p.add_argument("--hprio2", type=int, default=-1)
    p.add_argument("--sprio", type=int, default=0)
    p.add_argument("--epolls", type=int, default=15)
    p.add_argument("--mlpre", type=int, default=1)
    p.add_argument("--force_slow", type=lambda x: int(x, 0), default=0)
    p.add_argument("--fspin", type=int, default=64)
    p.add_argument("--spin", type=int, default=1000000)
    p.add_argument("--lds", type=int, default=0)
    p.add_argument("--minv", type=int, default=-1)
    p.add_argument("--diag", type=int, default=0)
    p.add_argument("--pin", type=int, default=0)
    p.add_argument("-o", default="-")
    return p.parse_args(argv)

if __name__ == "__main__":
    o = parse(sys.argv[1:])
    s = gen(o)
    if o.o == "-": sys.stdout.write(s)
    else: open(o.o, "w").write(s)
```

```python
import struct, sys, math, argparse

NAME = "standalone__tree_speculative_verify_tree_attention_over_candidate_token_tree__decode"
def f2u(x): return struct.unpack("<I", struct.pack("<f", x))[0]
def vr(a, n=1): return f"v{a}" if n == 1 else f"v[{a}:{a+n-1}]"
def sp(a): return f"s[{a}:{a+1}]"
def sq(a): return f"s[{a}:{a+3}]"

HEADER = """; Kernarg layout for this problem (72 bytes, ptrs only, base s[0:1]):
"""

DOC = """;
;
;         O[head l>>5][(l&15)*8 + ((l>>4)&1)*4 .. +3].
;
;
"""

class G:
    def __init__(self): self.l = []
    def __call__(self, s, c=None): self.l.append("    " + (s if c is None else f"{s:<72s}; {c}"))
    def lab(self, s): self.l.append(s + ":")
    def c(self, s): self.l.append("    ; " + s)
    def text(self): return "\n".join(self.l) + "\n"

def gen(o):
    NW, NT, D, GK, KP = 4, 32, 12, 4, 4
    OWN = o.cons
    C = math.log2(math.e) / math.sqrt(128.0)
    g = G()
    sQ, sK, sV, sKT, sVT, sMK, sOUT, sDBG, sWS = 4, 6, 8, 10, 12, 14, 16, 18, 20
    sHK, sSP, sW, sT0, sT1, sC, sNAT, sCNT, sT2, sG = 22, 23, 24, 25, 26, 27, 28, 29, 30, 31
    sRK, sRV = 32, 36
    sOf = 40
    sX0 = 48
    sE = 54
    sBox, sMl, sMt0, sMt1, sMt, sXC, sAr, sI, sTodo, sPre = 56, 57, 58, 59, 60, 61, 62, 63, 64, 65
    vLane, vW, vCh, vT0, vT1, vT2, vT3, vH = 1, 2, 3, 4, 5, 6, 7, 8
    vSl, vM, vL, vF, vLdsR, vLdsW, vNat = 9, 10, 11, 12, 13, 14, 15
    vLO, vL1, vL2, vL3 = 16, 17, 18, 19
    vQ, vMask, vAcc, vP, vD = 20, 24, 28, 32, 40
    vS = vD + 32
    vR = vS + NT
    vKa = vR + 4 * D
    vVa = vKa + 4
    vLC = vVa + 4
    MLB, DSH = 0x40000, 19
    DELTA = 1 << DSH
    LM, LN, LC, LO = 0, 128, 256, 512
    DPPM = "row_mask:0xf bank_mask:0xf"
    tpos = [13, 12, 15, 16, 17]
    def toff(t): return sum(1 << tpos[i] for i in range(5) if t >> i & 1)

    def quadsum(dbase, dsts, between=None):
        n = len(dsts)
        for r in range(4):
            if between: between()
            for i, d_ in enumerate(dsts):
                if r == 0: g(f"v_mov_b32_dpp v{d_}, v{dbase+4*i} quad_perm:[0,0,0,0] {DPPM}")
                else:      g(f"v_add_f32_dpp v{d_}, v{dbase+4*i+r}, v{d_} quad_perm:[{r},{r},{r},{r}] {DPPM}")
            if n == 1 and r < 3: g("s_nop 1")
    def rowred(v, op):
        for sw in ("v_permlane16_swap_b32", "v_permlane32_swap_b32"):
            g(f"v_mov_b32 v{vT0}, v{v}")
            g("s_nop 1")
            g(f"{sw} v{v}, v{vT0}")
            g(f"{op} v{v}, v{v}, v{vT0}")
    def dppred(v, op, ctrls):
        for c in ctrls:
            g("s_nop 1")
            g(f"{op}_dpp v{v}, v{v}, v{v} {c} {DPPM}")
    QX1, QX2 = "quad_perm:[1,0,3,2]", "quad_perm:[2,3,0,1]"

    g("s_load_dwordx16 s[4:19], s[0:1], 0")
    g("s_load_dwordx2 s[20:21], s[0:1], 64")
    g("s_cmp_ge_u32 s2, 256")
    g("s_cbranch_scc1 L_end", "extra workgroups leave")
    if o.map == "xcd":
        g(f"s_and_b32 s{sHK}, s2, 15", "kv head")
        g(f"s_lshr_b32 s{sSP}, s2, 4", "key split")
    else:
        g(f"s_and_b32 s{sSP}, s2, 15")
        g(f"s_lshr_b32 s{sHK}, s2, 4")
    g(f"v_and_b32 v{vLane}, 63, v0")
    g(f"v_lshrrev_b32 v{vW}, 6, v0")
    g(f"s_lshl4_add_u32 s{sG}, s{sHK}, s{sSP}", "producer number hk*16 + split")
    g(f"s_lshr_b32 s{sT0}, s{sG}, 1")
    g(f"v_readfirstlane_b32 s{sW}, v{vW}")
    g(f"s_lshl_b32 s{sT0}, s{sT0}, 18", "head and split bits 3..1")
    g(f"s_and_b32 s{sT1}, s{sSP}, 1")
    g(f"s_lshl_b32 s{sT1}, s{sT1}, 14")
    g(f"s_or_b32 s{sT0}, s{sT0}, s{sT1}")
    g(f"s_and_b32 s{sT1}, s{sSP}, 4")
    g(f"s_lshl_b32 s{sT1}, s{sT1}, 11", "half of the splits start on the other 8 KiB half")
    g(f"s_or_b32 s{sT0}, s{sT0}, s{sT1}")
    g(f"v_lshrrev_b32 v{vT0}, 4, v{vLane}")
    g(f"v_lshlrev_b32 v{vT0}, 6, v{vT0}")
    g(f"v_and_b32 v{vT1}, 3, v{vLane}")
    g(f"v_lshl_add_u32 v{vCh}, v{vT1}, 4, v{vT0}", "16-byte piece of a q / k row: (l>>4)*64 + (l&3)*16")
    g(f"v_bfe_u32 v{vT2}, v{vLane}, 2, 2")
    g(f"v_lshl_add_u32 v{vT2}, v{vT2}, 8, v{vCh}", "+ key (l>>2)&3 of the tile")
    g(f"v_lshl_add_u32 v{vT3}, v{vW}, 10, s{sT0}")
    g(f"v_add_u32 v{vKa}, v{vT2}, v{vT3}")
    g(f"v_lshl_add_u32 v{vVa}, v{vLane}, 4, v{vT3}")
    for i in range(1, 4): g(f"v_xor_b32 v{vKa+i}, {hex(toff(i))}, v{vKa}")
    g(f"s_mov_b32 s{sRK+2}, 0x2000000")
    g(f"s_mov_b32 s{sRK+3}, 0x20000")
    for j in range(1, 3): g(f"s_mov_b32 s{sOf+j}, {hex(toff(4 * j))}")
    g(f"v_bfe_u32 v{vH}, v{vLane}, 3, 1", "query head of this lane")
    g(f"v_lshl_add_u32 v{vT0}, v{vH}, 8, v{vCh}")
    g(f"s_lshl_b32 s{sT1}, s{sHK}, 9")
    g(f"v_add_u32 v{vT0}, s{sT1}, v{vT0}", "q fragment address")
    g(f"s_mov_b32 s{sC}, {hex(f2u(C))}", "log2(e) / sqrt(128)")
    g(f"v_lshlrev_b32 v{vLdsW}, 6, v{vH}")
    g(f"v_lshl_add_u32 v{vLdsR}, v{vT1}, 3, v{vLdsW}", "LDS (m,l) of wave l&3")
    g(f"s_lshl_b32 s{sMl}, s{sG}, 4")
    g(f"s_lshl2_add_u32 s{sBox}, s{sG}, s{sW}")
    g(f"s_lshl_b32 s{sBox}, s{sBox}, 8")
    g(f"s_cmp_eq_u32 s{sW}, {NW}")
    g("s_cbranch_scc1 L_stub")

    g("s_waitcnt lgkmcnt(0)")
    g(f"s_mov_b32 s{sRK}, s{sK}")
    g(f"s_and_b32 s{sRK+1}, s{sK+1}, 0xffff")
    g.c("make this wave's quarter of the box and the (m,l) entry resident in this XCD's L2 before the memory queues")
    g.c("fill up (values unused; a scalar request is 64 bytes, so these loads straddle the middle of each line)")
    for i in range(2): g(f"s_load_dwordx2 {sp(sX0 + 2 * i)}, {sp(sWS)}, s{sBox} offset:{128 * i + 60}")
    g(f"s_load_dword s{sX0+4}, {sp(sWS)}, s{sMl} offset:{hex(MLB)}")
    seq = []
    def issue():
        n = sum(1 for x in seq if isinstance(x, int))
        if n >= 2 * NT: return
        t = n % NT
        srd, va = (sRK, vKa) if n < NT else (sRV, vVa)
        so = f"s{sOf + (t >> 2)}" if t >> 2 else "0"
        g(f"buffer_load_dwordx4 {vr(vR + 4 * (n % D), 4)}, v{va + (t & 3)}, {sq(srd)}, {so} offen nt")
        seq.append(n)
    def wait_for(*items):
        g(f"s_waitcnt vmcnt({len(seq) - 1 - max(seq.index(x) for x in items)})")
    setup = [(f"s_mov_b32 s{sRV}, s{sV}",), (f"s_and_b32 s{sRV+1}, s{sV+1}, 0xffff",),
             (f"s_mov_b32 s{sRV+2}, 0x2000000",), (f"s_mov_b32 s{sRV+3}, 0x20000",)]
    setup += [(f"s_mov_b32 s{sOf+j}, {hex(toff(4 * j))}",) for j in range(3, 8)]
    setup += [(f"v_xor_b32 v{vVa+i}, {hex(toff(i))}, v{vVa}",) for i in range(1, 4)]
    setup += [(f"v_lshl_add_u32 v{vLdsW}, v{vW}, 3, v{vLdsW}", "LDS (m,l) of this wave"),
              (f"s_lshl_b32 s{sT0}, s{sG}, 10",),
              (f"v_lshl_add_u32 v{vSl}, v{vLane}, 4, s{sT0}", "own box"),
              (f"v_lshlrev_b32 v{vLO}, 4, v0", "own partial in LDS, and the other three"),
              (f"v_xor_b32 v{vL1}, 1024, v{vLO}",), (f"v_xor_b32 v{vL2}, 2048, v{vLO}",), (f"v_xor_b32 v{vL3}, 3072, v{vLO}",),
              (f"v_lshlrev_b32 v{vLC}, 2, v{vLane}", "this lane's arrival counter"),
              (f"v_and_b32 v{vT2}, 1, v{vLane}",), (f"v_lshlrev_b32 v{vT2}, 4, v{vT2}",),
              (f"s_mov_b32 s{sT0}, 0xffff",), (f"v_lshlrev_b32 v{vT2}, v{vT2}, s{sT0}",),
              (f"v_bfe_u32 v{vT1}, v{vLane}, 1, 2",), (f"v_mov_b32 v{vNat}, 0",)]
    issue()
    g(f"global_load_dwordx4 {vr(vQ,4)}, v{vT0}, {sp(sQ)}"); seq.append("q")
    g.c("set-up work sits between the first loads, so that the four waves take turns in the memory queue")
    k = 0
    for i in range(D - 1):
        if i < 7:
            m = (len(setup) * (i + 1)) // 7
            while k < m: g(*setup[k]); k += 1
        else:
            r = i - 7
            g(f"v_cmp_eq_u32 vcc, {r}, v{vT1}")
            g(f"v_mov_b32 v{vAcc+r}, 0")
            g("s_nop 0")
            g(f"v_cndmask_b32 v{vMask+r}, 0, v{vT2}, vcc", "mask of the bf16 slot l&7 in the P operand" if r == 0 else None)
        issue()
    g.c("---- K phase")
    NG = NT // GK
    for grp in range(NG):
        ts = list(range(GK * grp, GK * grp + GK))
        wait_for(ts[-1], "q")
        db = vD + 16 * (grp & 1)
        for i, t in enumerate(ts):
            g(f"v_mfma_f32_16x16x32_bf16 {vr(db+4*i,4)}, {vr(vR+4*(t % D),4)}, {vr(vQ,4)}, 0")
            if grp == 0: issue()
        if grp > 0: quadsum(vD + 16 * ((grp - 1) & 1), [vS + t - GK for t in ts], between=issue)
    quadsum(vD + 16 * ((NG - 1) & 1), [vS + t for t in range(NT - GK, NT)])
    g.c("---- softmax numerators against the wave maximum")
    g(f"v_max3_f32 v{vM}, v{vS}, v{vS+1}, v{vS+2}")
    for t in range(3, NT - 1, 2): g(f"v_max3_f32 v{vM}, v{vM}, v{vS+t}, v{vS+t+1}")
    g(f"v_max_f32 v{vM}, v{vM}, v{vS+NT-1}")
    rowred(vM, "v_max_f32")
    g(f"v_mul_f32 v{vM}, s{sC}, v{vM}", "log2 units")
    g(f"v_and_b32 v{vM}, -2, v{vM}")
    for t in range(NT): g(f"v_fma_f32 v{vS+t}, v{vS+t}, s{sC}, -v{vM}")
    g.c("instruction prefetch stops at a 4 KiB boundary: the helper enters the second page through the stub at launch,")
    g.c("so the code behind it is cached when the streaming waves get there")
    g("s_branch L_page2")
    g(".p2align 12")
    g.lab("L_stub")
    g("s_branch L_helper")
    g.lab("L_page2")
    for t in range(NT): g(f"v_exp_f32 v{vS+t}, v{vS+t}")
    g(f"v_add_f32 v{vL}, v{vS}, v{vS+1}")
    g(f"v_add_f32 v{vT1}, v{vS+2}, v{vS+3}")
    for t in range(4, NT, 2):
        g(f"v_add_f32 v{vL}, v{vL}, v{vS+t}")
        g(f"v_add_f32 v{vT1}, v{vT1}, v{vS+t+1}")
    g(f"v_add_f32 v{vL}, v{vL}, v{vT1}")
    rowred(vL, "v_add_f32")
    g(f"ds_write_b64 v{vLdsW}, {vr(vM,2)} offset:{LM}")
    g("s_waitcnt lgkmcnt(0)")
    g("s_barrier", "barrier 1")
    g(f"ds_read_b32 v{vF}, v{vLdsR} offset:{LM}")
    g("s_waitcnt lgkmcnt(0)")
    g(f"v_max_f32_dpp v{vF}, v{vF}, v{vF} {QX1} {DPPM}")
    dppred(vF, "v_max_f32", [QX2])
    g(f"v_sub_f32 v{vF}, v{vM}, v{vF}")
    g(f"v_exp_f32 v{vF}, v{vF}", "wave maximum -> workgroup maximum")
    g(f"v_mov_b32 v{vT1}, 1")
    g.c("---- V phase (the last four P operands are built ahead of time)")
    def preg(t): return vD + 4 * (t - (NT - KP)) if t >= NT - KP else vP + 4 * (t & 1)
    def pbuild(t):
        g(f"v_mul_f32 v{vS+t}, v{vF}, v{vS+t}")
        g(f"v_cvt_pk_bf16_f32 v{vS+t}, v{vS+t}, v{vS+t}")
        for r in range(4): g(f"v_and_b32 v{preg(t)+r}, v{vMask+r}, v{vS+t}")
    pbuild(0)
    g("s_nop 0")
    for t in range(NT):
        if t == NT - KP: g("s_setprio 3")
        wait_for(NT + t)
        g(f"v_mfma_f32_16x16x32_bf16 {vr(vAcc,4)}, {vr(preg(t),4)}, {vr(vR+4*((NT+t) % D),4)}, {vr(vAcc,4)}")
        if t + 1 < NT - KP: pbuild(t + 1)
        n0 = len(g.l)
        issue()
        if NT - 2 * KP <= t < NT - KP: pbuild(t + KP)
        if len(g.l) == n0 and t + 1 < NT - KP: g("s_nop 0")
    g.c("---- the lanes whose counter says 'last of the four waves' add up the partials and publish them")
    vA, vB, vC = vR, vR + 4, vR + 8
    assert (2 * NT - 1) % D >= 3
    g(f"s_mov_b64 {sp(sE)}, 0")
    g("s_nop 6")
    g(f"ds_write_b128 v{vLO}, {vr(vAcc,4)} offset:{LO}")
    g(f"ds_add_rtn_u32 v{vT0}, v{vLC}, v{vT1} offset:{LC}")
    g(f"ds_read_b128 {vr(vA,4)}, v{vL1} offset:{LO}")
    g(f"ds_read_b128 {vr(vB,4)}, v{vL2} offset:{LO}")
    g(f"ds_read_b128 {vr(vC,4)}, v{vL3} offset:{LO}")
    g("s_waitcnt lgkmcnt(3)")
    g(f"v_cmp_eq_u32 vcc, 3, v{vT0}")
    g("s_waitcnt lgkmcnt(2)")
    def padd(a, b):
        g(f"v_pk_add_f32 {vr(a,2)}, {vr(a,2)}, {vr(b,2)}")
        g(f"v_pk_add_f32 {vr(a+2,2)}, {vr(a+2,2)}, {vr(b+2,2)}")
    padd(vAcc, vA)
    g("s_and_b64 exec, exec, vcc")
    g("s_cbranch_scc0 L_join")
    g("s_waitcnt lgkmcnt(0)")
    padd(vB, vC)
    padd(vAcc, vB)
    for i in range(4): g(f"v_and_b32 v{vAcc+i}, -2, v{vAcc+i}")
    g(f"global_store_dwordx4 v{vSl}, {vr(vAcc,4)}, {sp(sWS)}", "read only by workgroups behind the same L2")
    g(f"s_mov_b64 {sp(sE)}, exec")
    g.lab("L_join")
    g("s_barrier", "barrier 2: the helper may start polling")
    g("s_mov_b64 exec, -1")
    g(f"ds_read_b32 v{vNat}, v{vNat} offset:{LN}")
    g("s_waitcnt lgkmcnt(0)")
    g(f"v_cmp_ne_u32 vcc, 0, v{vNat}")
    g("s_cbranch_vccnz L_through")
    g.lab("L_end")
    g("s_endpgm")
    g.lab("L_through")
    g(f"v_add_u32 v{vSl}, {hex(DELTA)}, v{vSl}")
    g(f"s_and_b64 exec, exec, {sp(sE)}")
    g("s_cbranch_scc0 L_through1")
    g(f"global_store_dwordx4 v{vSl}, {vr(vAcc,4)}, {sp(sWS)} sc1")
    g("s_waitcnt vmcnt(0)")
    g.lab("L_through1")
    g("s_barrier", "barrier 3 (write-through route only)")
    g("s_endpgm")

    hOnes, hK, hV, hML, hO, hT, hZ = 32, 44, 48, 50, 52, 56, 60
    hMk, hB, hC, hFa, hPr, hP, hMa, hOut, hAr, hMLo, hG = 64, 65, 66, 67, 68, 69, 70, 71, 72, 73, 74
    def slice_setup():
        g.c("addresses of output slice s63: lane = (producer l>>2, four values l&3)")
        g(f"s_lshl_b32 s{sT0}, s{sHK}, 14")
        g(f"s_lshl_b32 s{sT1}, s{sI}, 6")
        g(f"s_add_u32 s{sT0}, s{sT0}, s{sT1}")
        g(f"v_and_b32 v{vT1}, 3, v{vLane}")
        g(f"v_lshl_add_u32 v{hP}, v{hPr}, 10, s{sT0}")
        g(f"v_lshl_add_u32 v{hP}, v{vT1}, 4, v{hP}", "box piece")
        g(f"s_lshl_b32 s{sT0}, s{sHK}, 8")
        g(f"s_and_b32 s{sT1}, s{sI}, 8", "head * 8")
        g(f"s_add_u32 s{sT0}, s{sT0}, s{sT1}")
        g(f"s_add_u32 s{sT0}, s{sT0}, {hex(MLB)}")
        g(f"v_lshl_add_u32 v{hMa}, v{hPr}, 4, s{sT0}", "(m,l) entry")
        g(f"s_and_b32 s{sT0}, s{sI}, 3")
        g(f"s_lshl_b32 s{sT0}, s{sT0}, 5")
        g(f"s_and_b32 s{sT2}, s{sI}, 4")
        g(f"s_add_u32 s{sT0}, s{sT0}, s{sT2}")
        g(f"s_lshl_b32 s{sT2}, s{sHK}, 7")
        g(f"s_add_u32 s{sT0}, s{sT0}, s{sT2}")
        g(f"v_lshl_add_u32 v{vT1}, v{vT1}, 3, s{sT0}", "hk*128 + d0, d0 = (i&3)*32 + (l&3)*8 + (i&4)")
        g(f"v_lshlrev_b32 v{hG}, 1, v{vT1}", "v_tree piece")
        g(f"s_lshl4_add_u32 s{sT2}, s{sT1}, s{sT2}")
        g(f"v_lshrrev_b32 v{vT2}, 4, v{vLane}")
        g(f"v_add3_u32 v{vT1}, v{vT1}, v{vT2}, s{sT2}")
        g(f"v_lshlrev_b32 v{hOut}, 1, v{vT1}", "output element d0 + (l>>4)")
    def redirect():
        g.c("producers in s25 are read from the write-through region")
        g(f"v_lshrrev_b32 v{vT0}, v{hPr}, s{sT0}")
        g(f"v_and_b32 v{vT0}, 1, v{vT0}")
        g(f"v_lshl_add_u32 v{hP}, v{vT0}, {DSH}, v{hP}")
        g(f"s_mul_i32 s{sT1}, s{sHK}, {16 * 112}")
        g(f"s_add_u32 s{sT1}, s{sT1}, {hex(DELTA)}")
        g(f"v_mul_u32_u24 v{vT2}, 112, v{hPr}")
        g(f"v_add_u32 v{vT2}, s{sT1}, v{vT2}")
        g(f"v_mad_u32_u24 v{hMa}, v{vT0}, v{vT2}, v{hMa}")
    g(".p2align 5")
    if o.hpad: g(f".fill {o.hpad // 4}, 4, 0xbf800000")
    g.lab("L_helper")
    g(f"s_getreg_b32 s{sXC}, hwreg(HW_REG_XCC_ID, 0, 4)")
    g(f"s_add_u32 s{sXC}, s{sXC}, 1")
    g(f"s_lshl_b32 s{sT0}, s{sHK}, 4")
    g(f"v_mov_b32 v{hFa}, s{sT0}", "this head's words in d_debug")
    g(f"s_add_u32 s{sMl}, s{sMl}, {hex(MLB)}")
    g(f"v_lshl_add_u32 v{hMLo}, v{vH}, 3, s{sMl}", "own (m,l) entry (lanes 0 and 8)")
    g(f"s_lshl_b32 s{sT0}, s{sG}, 10")
    g(f"v_lshl_add_u32 v{hB}, v{vLane}, 4, s{sT0}", "own box")
    g(f"s_lshl_b32 s{sBox}, s{sHK}, 8")
    g(f"v_add_u32 v{hK}, s{sBox}, v{vCh}", "k_tree fragment")
    g(f"s_add_u32 s{sT1}, s{sBox}, {hex(MLB)}")
    g(f"v_lshl_add_u32 v{hC}, v{vLane}, 4, s{sT1}", "(m,l) entry of producer l (lanes 0..15)")
    for i in range(4): g(f"v_mov_b32 v{hOnes+i}, -1")
    g(f"v_lshrrev_b32 v{hPr}, 2, v{vLane}")
    g(f"s_mov_b32 s{sI}, s{sSP}")
    g(f"s_mov_b32 s{sAr}, 0")
    slice_setup()
    g(f"s_cmp_lg_u32 s{sSP}, {OWN}")
    g("s_waitcnt lgkmcnt(0)")
    g.c("tree token rows go through the scalar path first: a miss there does not hold up the streaming waves")
    for i in range(2): g(f"s_load_dwordx2 {sp(sX0)}, {sp(sKT)}, s{sBox} offset:{128 * i + 60}")
    for i in range(2): g(f"s_load_dwordx2 {sp(sX0)}, {sp(sVT)}, s{sBox} offset:{128 * i + 60}")
    g(f"s_load_dword s{sX0+2}, {sp(sMK)}, 0", "tree_mask in the low half")
    g("s_cbranch_scc1 L_h0")
    g("s_mov_b64 exec, 0xffff")
    g(f"global_store_dwordx4 v{hC}, {vr(hOnes,4)}, {sp(sWS)}", "owner: the 16 (m,l) entries are empty")
    g("s_mov_b64 exec, -1")
    g.lab("L_h0")
    g(f"global_store_dwordx4 v{hB}, {vr(hOnes,4)}, {sp(sWS)}", "own box is empty")
    g(f"v_mov_b32 v{vF}, s{sXC}")
    g("s_waitcnt vmcnt(0)")
    g("s_cbranch_scc1 L_h1")
    g("s_mov_b64 exec, 1")
    g(f"global_store_dword v{hFa}, v{vF}, {sp(sDBG)} sc1", "owner: raise the flag")
    g("s_mov_b64 exec, -1")
    g.lab("L_h1")
    g("s_waitcnt lgkmcnt(0)")
    g(f"global_load_dwordx4 {vr(vQ,4)}, v{vT0}, {sp(sQ)}")
    g(f"global_load_dwordx4 {vr(hK,4)}, v{hK}, {sp(sKT)}")
    g(f"global_load_dwordx2 {vr(hV,2)}, v{hG}, {sp(sVT)}")
    g("s_waitcnt vmcnt(0)")
    g(f"v_mfma_f32_16x16x32_bf16 {vr(vD,4)}, {vr(hK,4)}, {vr(vQ,4)}, 0")
    g(f"v_lshlrev_b32 v{vT1}, 2, v{vLane}")
    g(f"v_mov_b32 v{vT2}, 0")
    g(f"ds_write_b32 v{vT1}, v{vT2} offset:{LC}", "arrival counters start at zero")
    g(f"s_lshl_b32 s{sT1}, s{sX0+2}, 16")
    g(f"v_sub_f32 v{hMk}, 1.0, s{sT1}")
    g(f"s_mov_b32 s{sT0}, {hex(f2u(-1e9 * math.sqrt(128.0)))}", "-1e9 / scale")
    g("s_nop 1")
    quadsum(vD, [vM])
    g(f"v_fma_f32 v{vM}, v{hMk}, s{sT0}, v{vM}")
    g(f"v_mul_f32 v{vM}, s{sC}, v{vM}", "masked tree score, log2 units")
    g("s_waitcnt lgkmcnt(0)")
    g(f"v_readlane_b32 s{sMt0}, v{vM}, 0")
    g(f"v_readlane_b32 s{sMt1}, v{vM}, 8")
    g("s_barrier", "barrier 1")
    g(f"global_load_dword v{vF}, v{hFa}, {sp(sDBG)} sc1")
    g(f"ds_read_b64 {vr(vD,2)}, v{vLdsR} offset:{LM}")
    g(f"s_mov_b32 s{sCNT}, {o.fspin}")
    g("s_waitcnt lgkmcnt(0)")
    g(f"v_max_f32_dpp v{vM}, v{vD}, v{vD} {QX1} {DPPM}")
    dppred(vM, "v_max_f32", [QX2])
    g(f"v_sub_f32 v{vD}, v{vD}, v{vM}")
    g(f"v_exp_f32 v{vD}, v{vD}")
    g("s_nop 0")
    g(f"v_mul_f32 v{vL}, v{vD}, v{vD+1}")
    dppred(vL, "v_add_f32", [QX1, QX2])
    g(f"v_and_b32 v{vM}, -2, v{vM}")
    g(f"v_and_b32 v{vL}, -2, v{vL}", "workgroup (m,l)")
    g.lab("L_flag")
    g("s_waitcnt vmcnt(0)")
    g(f"v_readfirstlane_b32 s{sNAT}, v{vF}")
    g(f"s_sub_u32 s{sCNT}, s{sCNT}, 1")
    g("s_cbranch_scc1 L_flag1", "no flag in time: write-through route")
    g(f"s_cmp_lg_u32 s{sNAT}, 0")
    g("s_cbranch_scc1 L_flag1")
    g(f"global_load_dword v{vF}, v{hFa}, {sp(sDBG)} sc1")
    g("s_branch L_flag")
    g.lab("L_flag1")
    if o.force_slow:
        g(f"s_bitcmp1_b32 {o.force_slow}, s{sSP}"); g(f"s_cselect_b32 s{sNAT}, 0, s{sNAT}")
    g(f"s_xor_b32 s{sNAT}, s{sNAT}, s{sXC}", "0 = same XCD as the owner")
    g(f"s_cmp_eq_u32 s{sSP}, {OWN}")
    g(f"s_cselect_b32 s{sNAT}, 0, s{sNAT}")
    g(f"v_mov_b32 v{vT0}, 0")
    g(f"v_mov_b32 v{vT1}, s{sNAT}")
    g(f"ds_write_b32 v{vT0}, v{vT1} offset:{LN}")
    g(f"s_mov_b32 s{sCNT}, {hex(o.spin)}")
    g(f"s_cmp_lg_u32 s{sNAT}, 0")
    g("s_waitcnt lgkmcnt(0)")
    g("s_cbranch_scc1 L_hthrough")
    g("s_mov_b64 exec, 0x101")
    g(f"global_store_dwordx2 v{hMLo}, {vr(vM,2)}, {sp(sWS)}")
    g("s_mov_b64 exec, -1")
    g(f"s_mov_b32 s{sTodo}, -1")
    g(f"s_mov_b32 s{sPre}, {o.npre}", "tries left before barrier 2 has to be taken")
    g.lab("L_slice")
    g(f"s_bitcmp1_b32 s{sI}, 3")
    g(f"s_cselect_b32 s{sMt}, s{sMt1}, s{sMt0}")
    g(f"v_lshlrev_b32 v{hT}, 16, v{hV}")
    g(f"v_and_b32 v{hT+1}, 0xffff0000, v{hV}")
    g(f"v_lshlrev_b32 v{hT+2}, 16, v{hV+1}")
    g(f"v_and_b32 v{hT+3}, 0xffff0000, v{hV+1}")
    for i in range(4): g(f"v_mov_b32 v{hO+i}, -1")
    g.lab("L_ml")
    g(f"global_load_dwordx2 {vr(hML,2)}, v{hMa}, {sp(sWS)} sc1")
    g(f"global_load_dword v{hAr}, v{hFa}, {sp(sDBG)} offset:4 sc1")
    g(f"s_sub_u32 s{sCNT}, s{sCNT}, 1")
    g("s_waitcnt vmcnt(1)")
    g(f"v_bitop3_b32 v{vT0}, v{hML}, v{hML+1}, 1 bitop3:0xa8", "(a | b) & 1")
    g("s_cbranch_scc1 L_hend")
    g(f"v_cmp_ne_u32 vcc, 0, v{vT0}")
    g("s_cbranch_vccnz L_mlmiss")
    g.c("weights exp2(m - M) / L of the 16 producers and of the tree token")
    g(f"v_max_f32 v{vM}, s{sMt}, v{hML}")
    dppred(vM, "v_max_f32", ["row_ror:4", "row_ror:8"])
    rowred(vM, "v_max_f32")
    g(f"v_sub_f32 v{hML}, v{hML}, v{vM}")
    g(f"v_sub_f32 v{hG}, s{sMt}, v{vM}")
    g(f"v_exp_f32 v{hML}, v{hML}")
    g(f"v_exp_f32 v{hG}, v{hG}")
    g(f"v_mul_f32 v{vL}, v{hML}, v{hML+1}")
    dppred(vL, "v_add_f32", ["row_ror:4", "row_ror:8"])
    rowred(vL, "v_add_f32")
    g(f"v_add_f32 v{vL}, v{vL}, v{hG}")
    g(f"v_rcp_f32 v{vL}, v{vL}")
    g(f"v_mul_f32 v{hG}, 0x3d800000, v{hG}", "1/16: each producer lane carries its share of the tree term")
    g(f"v_mul_f32 v{hML}, v{hML}, v{vL}")
    g(f"v_mul_f32 v{hG}, v{hG}, v{vL}")
    g(f"v_mov_b32 v{hML+1}, v{hML}")
    for i in range(4): g(f"v_mul_f32 v{hT+i}, v{hG}, v{hT+i}")
    g(f"s_cmp_eq_u32 s{sPre}, 0")
    g("s_mov_b64 vcc, -1")
    g("s_cbranch_scc1 L_poll0")
    g(f"s_mov_b32 s{sPre}, 0")
    g("s_barrier", "barrier 2")
    g.c("a word only ever changes from empty to its final value, so several loads may be in flight into the same")
    g.c("registers, and what passed the check is still there for the arithmetic behind it")
    if o.loopv == 0:
        g.lab("L_poll0")
        g.lab("L_poll")
        g("s_mov_b64 exec, vcc", "lanes still waiting")
        g(f"global_load_dwordx4 {vr(hO,4)}, v{hP}, {sp(sWS)} sc1")
        g("s_mov_b64 exec, -1")
        g(f"s_waitcnt vmcnt({o.pdepth})")
        g(f"v_or3_b32 v{vT0}, v{hO}, v{hO+1}, v{hO+2}")
        g(f"v_bitop3_b32 v{vT0}, v{vT0}, v{hO+3}, 1 bitop3:0xa8")
        g(f"v_cmp_ne_u32 vcc, 0, v{vT0}")
        g(f"v_pk_fma_f32 {vr(hZ,2)}, {vr(hML,2)}, {vr(hO,2)}, {vr(hT,2)}")
        g(f"v_pk_fma_f32 {vr(hZ+2,2)}, {vr(hML,2)}, {vr(hO+2,2)}, {vr(hT+2,2)}")
        g(f"s_sub_u32 s{sCNT}, s{sCNT}, 1")
        g("s_cbranch_scc1 L_hend")
        g(f"v_permlane32_swap_b32 v{hZ}, v{hZ+2}")
        g(f"v_permlane32_swap_b32 v{hZ+1}, v{hZ+3}")
        g("s_cbranch_vccnz L_poll")
        g(f"v_pk_add_f32 {vr(hZ,2)}, {vr(hZ,2)}, {vr(hZ+2,2)}")
        g("s_nop 1")
    else:
        g.lab("L_poll")
        g("s_cbranch_scc1 L_hend")
        g.lab("L_poll0")
        g("s_mov_b64 exec, vcc", "lanes still waiting")
        g(f"global_load_dwordx4 {vr(hO,4)}, v{hP}, {sp(sWS)} sc1")
        g("s_mov_b64 exec, -1")
        g(f"s_waitcnt vmcnt({o.pdepth})")
        g(f"v_or3_b32 v{vT0}, v{hO}, v{hO+1}, v{hO+2}")
        g(f"v_bitop3_b32 v{vT0}, v{vT0}, v{hO+3}, 1 bitop3:0xa8")
        g(f"v_pk_fma_f32 {vr(hZ,2)}, {vr(hML,2)}, {vr(hO,2)}, {vr(hT,2)}")
        g(f"v_pk_fma_f32 {vr(hZ+2,2)}, {vr(hML,2)}, {vr(hO+2,2)}, {vr(hT+2,2)}")
        g(f"v_cmp_ne_u32 vcc, 0, v{vT0}")
        g(f"s_sub_u32 s{sCNT}, s{sCNT}, 1")
        g(f"v_permlane32_swap_b32 v{hZ}, v{hZ+2}")
        g(f"v_permlane32_swap_b32 v{hZ+1}, v{hZ+3}")
        g(f"v_pk_add_f32 {vr(hZ,2)}, {vr(hZ,2)}, {vr(hZ+2,2)}")
        g("s_cbranch_vccnz L_poll")
        g("s_nop 0")
    g(f"v_permlane16_swap_b32 v{hZ}, v{hZ+1}")
    g(f"v_add_f32 v{hZ}, v{hZ}, v{hZ+1}", "row r now holds component r")
    dppred(hZ, "v_add_f32", ["row_ror:8", "row_ror:4"])
    g(f"v_cvt_pk_bf16_f32 v{hZ}, v{hZ}, v{hZ}")
    g(f"global_store_short v{hOut}, v{hZ}, {sp(sOUT)}")
    g(f"s_and_b32 s{sTodo}, s{sTodo}, s{sAr}")
    g("s_cbranch_scc1 L_more")
    g.lab("L_hend")
    g("s_endpgm")
    g.lab("L_mlmiss")
    g("s_waitcnt vmcnt(0)")
    g(f"v_readfirstlane_b32 s{sT1}, v{hAr}")
    g("s_nop 0")
    g(f"s_andn2_b32 s{sT0}, s{sT1}, s{sAr}")
    g(f"s_or_b32 s{sAr}, s{sAr}, s{sT1}")
    redirect()
    g(f"s_cmp_eq_u32 s{sPre}, 0")
    g("s_cbranch_scc1 L_ml")
    g(f"s_sub_u32 s{sPre}, s{sPre}, 1")
    g(f"s_cmp_lg_u32 s{sPre}, 0")
    g("s_cbranch_scc1 L_ml")
    g("s_barrier", "barrier 2 (taken here when others are far behind)")
    g("s_branch L_ml")
    g.lab("L_more")
    g.c("the owner also combines the slices of the write-through workgroups")
    g(f"s_cmp_lg_u32 s{sSP}, {OWN}")
    g("s_cbranch_scc1 L_hend")
    g(f"s_ff1_i32_b32 s{sI}, s{sTodo}")
    g(f"s_bitset0_b32 s{sTodo}, s{sI}")
    g("s_waitcnt vmcnt(0)")
    slice_setup()
    g(f"global_load_dwordx2 {vr(hV,2)}, v{hG}, {sp(sVT)}")
    g(f"s_mov_b32 s{sT0}, s{sAr}")
    redirect()
    g("s_waitcnt vmcnt(0)")
    g("s_branch L_slice")
    g.lab("L_hthrough")
    g(f"s_mul_i32 s{sT0}, s{sG}, 112")
    g(f"s_add_u32 s{sT0}, s{sT0}, {hex(DELTA)}")
    g(f"v_add_u32 v{hMLo}, s{sT0}, v{hMLo}")
    g(f"s_lshl_b32 s{sT0}, 1, s{sSP}")
    g(f"v_mov_b32 v{vT0}, s{sT0}")
    g("s_mov_b64 exec, 0x101")
    g(f"global_store_dwordx2 v{hMLo}, {vr(vM,2)}, {sp(sWS)} sc1")
    g("s_mov_b64 exec, 1")
    g("s_barrier", "barrier 2")
    g("s_waitcnt vmcnt(0)")
    g("s_barrier", "barrier 3: every write-through store is acknowledged")
    g(f"global_atomic_or v{hFa}, v{vT0}, {sp(sDBG)} offset:4 sc1")
    g("s_endpgm")
    assert vLC < 176
    return HEADER + f"; @launch grid=(256,1,1) block=(320,1,1) lds={LO + 4096}\n" + DOC + f""".amdgcn_target "amdgcn-amd-amdhsa--gfx950"
.text
.globl {NAME}_kernel
.p2align 8
.type {NAME}_kernel,@function
{NAME}_kernel:
""" + g.text() + f""".section .rodata,"a"
.p2align 6
.amdhsa_kernel {NAME}_kernel
  .amdhsa_next_free_vgpr 176
  .amdhsa_next_free_sgpr 72
  .amdhsa_accum_offset 176
  .amdhsa_group_segment_fixed_size 0
  .amdhsa_kernarg_size 72
  .amdhsa_user_sgpr_count 2
  .amdhsa_user_sgpr_kernarg_segment_ptr 1
  .amdhsa_system_sgpr_workgroup_id_x 1
  .amdhsa_float_denorm_mode_32 3
.end_amdhsa_kernel
"""

if __name__ == "__main__":
    p = argparse.ArgumentParser()
    p.add_argument("--map", default="xcd")
    p.add_argument("--cons", type=int, default=0)
    p.add_argument("--force_slow", type=lambda x: int(x, 0), default=0)
    p.add_argument("--fspin", type=int, default=64)
    p.add_argument("--spin", type=lambda x: int(x, 0), default=0x400000)
    p.add_argument("--npre", type=int, default=8)
    p.add_argument("--pdepth", type=int, default=2)
    p.add_argument("--hpad", type=int, default=0)
    p.add_argument("--loopv", type=int, default=0)
    p.add_argument("-o", default="-")
    o = p.parse_args()
    s = gen(o)
    if o.o == "-": sys.stdout.write(s)
    else: open(o.o, "w").write(s)
```
